```python
import torch

def _softmax(x, axis=-1):
    return torch.softmax(x, dim=axis)

def _gelu(x):
    return torch.nn.functional.gelu(x, approximate='tanh')

def _silu(x):
    return torch.nn.functional.silu(x)

def _sigmoid(x):
    return torch.sigmoid(x)

def _layernorm(x, axis=-1, eps=1e-05):
    m = x.mean(dim=axis, keepdim=True)
    v = x.var(dim=axis, keepdim=True, unbiased=False)
    return (x - m) / torch.sqrt(v + eps)

def _scatter_add(tgt, idx, src, axis=0):
    return tgt.clone().index_add_(axis, idx, src)

def _segment_sum(src, seg, n):
    out = torch.zeros((n,) + src.shape[1:], dtype=src.dtype)
    return out.index_add_(0, seg, src)

def _pad(x, pw):
    flat = tuple((v for pair in reversed(pw) for v in pair))
    return torch.nn.functional.pad(x, flat)
kernel_name = 'parallel_sum__compressed_kv_cla__mixer_gmlp__prompt'

def setup_inputs():

    _w = lambda a: (lambda t: t.to(torch.bfloat16) if t.is_floating_point() else t)(torch.as_tensor(a))

    def _A_setup():
        B, H, Sq, Sk, D, M = (1, 32, 2048, 2048, 128, 512)
        Dc = 4 * D
        return {'x': _w((lambda *s: torch.randn(*s, dtype=torch.bfloat16) * 0.05)(B, Sq, M)), 'c_kv': _w((lambda *s: torch.randn(*s, dtype=torch.bfloat16) * 1.6)(B, Sk, Dc)), 'w_q': _w((lambda *s: torch.randn(*s, dtype=torch.bfloat16) * 1.6)(M, H, D) * M ** (-0.5)), 'w_uk': _w((lambda *s: torch.randn(*s, dtype=torch.bfloat16) * 1.6)(Dc, H, D) * Dc ** (-0.5)), 'w_uv': _w((lambda *s: torch.randn(*s, dtype=torch.bfloat16) * 1.6)(Dc, H, D) * Dc ** (-0.5)), 'w_o': _w((lambda *s: torch.randn(*s, dtype=torch.bfloat16) * 1.6)(H, D, M) * (H * D) ** (-0.5))}
    _A_in = _A_setup()

    def _B_setup():
        B, S, D, F = (1, 2048, 512, 1792)
        Fh = F // 2
        return {'x': _w((lambda *s: torch.randn(*s, dtype=torch.bfloat16) * 0.05)(B, S, D)), 'w_in': _w((lambda *s: torch.randn(*s, dtype=torch.bfloat16) * 0.4)(D, 2 * Fh)), 'w_sp': _w(0.01 * (lambda *s: torch.randn(*s, dtype=torch.bfloat16) * 0.4)(S, S)), 'b_sp': _w(1.0 + 0.01 * (lambda *s: torch.randn(*s, dtype=torch.bfloat16) * 0.05)(S)), 'w_out': _w((lambda *s: torch.randn(*s, dtype=torch.bfloat16) * 0.05)(Fh, D))}
    _B_in = _B_setup()
    return {'A_x': _A_in['x'], 'A_c_kv': _A_in['c_kv'], 'A_w_q': _A_in['w_q'], 'A_w_uk': _A_in['w_uk'], 'A_w_uv': _A_in['w_uv'], 'A_w_o': _A_in['w_o'], 'B_x': _B_in['x'], 'B_w_in': _B_in['w_in'], 'B_w_sp': _B_in['w_sp'], 'B_b_sp': _B_in['b_sp'], 'B_w_out': _B_in['w_out']}

def reference(A_x, A_c_kv, A_w_q, A_w_uk, A_w_uv, A_w_o, B_x, B_w_in, B_w_sp, B_b_sp, B_w_out):

    def _A_ref(x, c_kv, w_q, w_uk, w_uv, w_o):
        B, Sq, M = (x.shape[0], x.shape[1], x.shape[2])
        Sk = c_kv.shape[1]
        H, D = (w_q.shape[1], w_q.shape[2])
        q = torch.einsum('bqm,mhd->bhqd', x, w_q)
        k = torch.einsum('bkc,chd->bhkd', c_kv, w_uk)
        v = torch.einsum('bkc,chd->bhkd', c_kv, w_uv)
        scores = torch.einsum('bhqd,bhkd->bhqk', q, k) * D ** (-0.5)
        off = Sk - Sq
        qi = torch.arange(Sq)[:, None]
        kj = torch.arange(Sk)[None, :]
        cmask = kj <= qi + off
        scores = torch.where(cmask[None, None], scores, -1000000000.0)
        p = _softmax(scores, axis=-1)
        ctx = torch.einsum('bhqk,bhkd->bhqd', p, v)
        return torch.einsum('bhqd,hdm->bqm', ctx, w_o)

    def _B_ref(x, w_in, w_sp, b_sp, w_out):
        B, S, D = x.shape
        F = w_in.shape[-1]
        Fh = F // 2
        z = _gelu(torch.einsum('bsd,df->bsf', x, w_in))
        z1 = z[..., :Fh].clone()
        z2 = _layernorm(z[..., Fh:], axis=-1)
        g = torch.einsum('ts,bsf->btf', w_sp, z2) + b_sp[None, :, None]
        return torch.einsum('bsf,fd->bsd', z1 * g, w_out)
    x = A_x
    xn = _layernorm(x, axis=-1)
    return x + _A_ref(xn, A_c_kv, A_w_q, A_w_uk, A_w_uv, A_w_o) + _B_ref(xn, B_w_in, B_w_sp, B_b_sp, B_w_out)
```

```python
import re, struct

def f32bits(x):
    return struct.unpack("<I", struct.pack("<f", x))[0]
def hexf(x):
    return "0x%08x" % f32bits(x)

def vr(b, n=1):
    return f"v{b}" if n == 1 else f"v[{b}:{b+n-1}]"
def ar(b, n=1):
    return f"a{b}" if n == 1 else f"a[{b}:{b+n-1}]"
def sr(b, n=1):
    return f"s{b}" if n == 1 else f"s[{b}:{b+n-1}]"

class Asm:
    def __init__(self):
        self.L = []
        self.uid = 0
    def __call__(self, s):
        for line in s.split("\n"):
            line = line.strip()
            if line:
                self.L.append(line)
    def ext(self, lst):
        for s in lst:
            self(s)
    def label(self, name):
        self.L.append(name + ":")
    def newlabel(self, base):
        self.uid += 1
        return f"L_{base}_{self.uid}"
    def text(self):
        out = []
        for l in self.L:
            if l.endswith(":") or l.startswith(".") or l.startswith(";"):
                out.append(l)
            else:
                out.append("    " + l)
        return "\n".join(out) + "\n"

class Alloc:
    def __init__(self, start=0, limit=256):
        self.p = start; self.limit = limit; self.names = {}
    def get(self, n=1, align=1, name=None):
        self.p = (self.p + align - 1) // align * align
        b = self.p; self.p += n
        assert self.p <= self.limit, f"out of regs: {self.p} > {self.limit}"
        if name: self.names[name] = b
        return b

def srd(a, d, base_lo, base_hi, nbytes):
    a(f"s_mov_b32 s{d}, s{base_lo}")
    a(f"s_mov_b32 s{d+1}, s{base_hi}")
    a(f"s_mov_b32 s{d+2}, {nbytes}")
    a(f"s_mov_b32 s{d+3}, 0x20000")

def srd_off(a, d, base_lo, base_hi, off, nbytes):
    a(f"s_add_u32 s{d}, s{base_lo}, {off}")
    a(f"s_addc_u32 s{d+1}, s{base_hi}, 0")
    a(f"s_mov_b32 s{d+2}, {nbytes}")
    a(f"s_mov_b32 s{d+3}, 0x20000")

def interleave(mfmas, fillers, per_gap=None):
    out = []
    n = len(mfmas); m = len(fillers); k = 0
    for i, grp in enumerate(mfmas):
        out += grp
        tgt = (i + 1) * m // n
        while k < tgt:
            out.append(fillers[k]); k += 1
    return out

def kernel_desc(name, vgpr, sgpr=102, accum=None):
    if accum is None:
        accum = (vgpr + 3) // 4 * 4
    return f""".p2align 6
.amdhsa_kernel {name}
  .amdhsa_next_free_vgpr {vgpr}
  .amdhsa_next_free_sgpr {sgpr}
  .amdhsa_accum_offset {accum}
  .amdhsa_group_segment_fixed_size 0
  .amdhsa_kernarg_size 112
  .amdhsa_user_sgpr_count 2
  .amdhsa_user_sgpr_kernarg_segment_ptr 1
  .amdhsa_system_sgpr_workgroup_id_x 1
.end_amdhsa_kernel
"""
```

```python
import math
from asmlib import *
from layout import *

LOG2E = 1.4426950408889634
QSCALE = (128 ** -0.5) * LOG2E
GC1 = -2.0 * math.sqrt(2.0 / math.pi) * LOG2E
GC2 = GC1 * 0.044715
OOB = 0x80000000

def gen_k1(a, name="k1_kernel"):
    D = 5; R = 8
    va = Alloc(1)
    vA = va.get(128, 4)
    vACC = [va.get(16, 4), va.get(16, 4)]
    vF = va.get(4 * R, 4)
    vPK = va.get(8, 4)
    vDMA = va.get(4)
    vRD = [va.get(), va.get()]
    vRB = va.get()
    vST = va.get()
    vT = va.get(16)
    vLane = va.get()
    nv = va.p
    sA, sW, sO = 20, 24, 28
    sWave, sRB, sG, sStart, sN, sT, sDoff, sM0, sOoff, sTb, sC1, sC2, sTmp, sTmp2, sCt, sLd = range(32, 48)

    a(f".globl {name}\n.p2align 8\n.type {name},@function")
    a.label(name)
    a(f"s_cmp_ge_u32 s2, 256")
    a(f"s_cbranch_scc1 L_k1_exit")
    a(f"s_load_dwordx4 s[4:7], s[0:1], {KA_X}")
    a(f"s_load_dwordx4 s[8:11], s[0:1], {KA_WQ}")
    a(f"s_load_dwordx2 s[12:13], s[0:1], {KA_WUV}")
    a(f"s_load_dwordx2 s[14:15], s[0:1], {KA_WIN}")
    a(f"s_load_dwordx2 s[16:17], s[0:1], {KA_WS}")
    a(f"v_lshrrev_b32 v{vT}, 6, v0")
    a(f"v_and_b32 v{vLane}, 63, v0")
    a(f"v_readfirstlane_b32 s{sWave}, v{vT}")
    a(f"s_and_b32 s{sTmp}, s2, 7")
    a(f"s_lshl_b32 s{sTmp}, s{sTmp}, 2")
    a(f"s_lshr_b32 s{sTmp2}, s2, 3")
    a(f"s_and_b32 s{sTmp2}, s{sTmp2}, 3")
    a(f"s_add_u32 s{sG}, s{sTmp}, s{sTmp2}")
    a(f"s_lshr_b32 s{sRB}, s2, 5")
    a(f"s_lshl_b32 s{sTb}, s{sRB}, 3")
    a(f"s_add_u32 s{sTb}, s{sTb}, s{sWave}")
    a(f"v_lshrrev_b32 v{vT}, 5, v{vLane}")
    a(f"v_lshlrev_b32 v{vRB}, 9, v{vT}")
    a(f"v_bfe_u32 v{vT}, v{vLane}, 2, 2")
    a(f"v_lshl_add_u32 v{vRB}, v{vT}, 6, v{vRB}")
    a(f"v_bfe_u32 v{vT}, v{vLane}, 4, 1")
    a(f"v_lshl_add_u32 v{vRB}, v{vT}, 5, v{vRB}")
    a(f"v_and_b32 v{vT}, 3, v{vLane}")
    a(f"v_lshl_add_u32 v{vRB}, v{vT}, 3, v{vRB}")
    a(f"v_lshlrev_b32 v{vST}, 4, v{vLane}")
    a(f"s_mov_b32 s{sC1}, {hexf(GC1)}")
    a(f"s_mov_b32 s{sC2}, {hexf(GC2)}")
    a("s_waitcnt lgkmcnt(0)")
    a(f"s_cmp_lt_u32 s{sG}, 9")
    a("s_cbranch_scc1 L_k1_K")
    a(f"s_cmp_lt_u32 s{sG}, 18")
    a("s_cbranch_scc1 L_k1_V")
    a(f"s_cmp_lt_u32 s{sG}, 28")
    a("s_cbranch_scc1 L_k1_Q")
    a("s_branch L_k1_Z")

    for kind in "KVQZ":
        a.label(f"L_k1_{kind}")
        rs = 3584 if kind == "Z" else 8192
        wbytes = 512 * rs
        if kind in "KV":
            if kind == "V": a(f"s_sub_u32 s{sG}, s{sG}, 9")
            a(f"s_mul_i32 s{sStart}, s{sG}, 14")
            a(f"s_min_u32 s{sTmp}, s{sG}, 2")
            a(f"s_add_u32 s{sStart}, s{sStart}, s{sTmp}")
            a(f"s_cmp_lt_u32 s{sG}, 2")
            a(f"s_cselect_b32 s{sN}, 15, 14")
        elif kind == "Q":
            a(f"s_sub_u32 s{sG}, s{sG}, 18")
            a(f"s_mul_i32 s{sStart}, s{sG}, 13")
            a(f"s_cmp_eq_u32 s{sG}, 9")
            a(f"s_cselect_b32 s{sTmp}, 1, 0")
            a(f"s_sub_u32 s{sStart}, s{sStart}, s{sTmp}")
            a(f"s_cmp_lt_u32 s{sG}, 8")
            a(f"s_cselect_b32 s{sN}, 13, 12")
        else:
            a(f"s_sub_u32 s{sG}, s{sG}, 28")
            a(f"s_mul_i32 s{sStart}, s{sG}, 14")
            a(f"s_mov_b32 s{sN}, 14")
        ap = 4 if kind in "QZ" else 6
        wp = {"Q": 8, "K": 10, "V": 12, "Z": 14}[kind]
        srd(a, sA, ap, ap + 1, 2048 * 1024)
        srd(a, sW, wp, wp + 1, wbytes)
        ooff = {"Q": WS_Q, "K": WS_K, "V": WS_V, "Z": WS_Z}[kind]
        osz = 64 * 56 * 2048 if kind == "Z" else 16 * MB
        srd_off(a, sO, 16, 17, ooff, osz)
        a(f"v_lshrrev_b32 v{vT}, 2, v{vLane}")
        a(f"s_lshl_b32 s{sTmp}, s{sWave}, 6")
        a(f"v_add_u32 v{vT}, s{sTmp}, v{vT}")
        a(f"s_mov_b32 s{sTmp}, {rs}")
        a(f"v_mul_lo_u32 v{vT}, v{vT}, s{sTmp}")
        a(f"v_and_b32 v{vT+1}, 3, v{vLane}")
        a(f"v_lshl_add_u32 v{vDMA}, v{vT+1}, 4, v{vT}")
        for i in range(1, 4):
            a(f"v_add_u32 v{vDMA+i}, {16*rs - 1024}, v{vDMA+i-1}")
        a(f"v_and_b32 v{vT}, 31, v{vLane}")
        a(f"v_lshlrev_b32 v{vT}, 10, v{vT}")
        a(f"v_lshrrev_b32 v{vT+1}, 5, v{vLane}")
        a(f"v_lshl_add_u32 v{vT}, v{vT+1}, 4, v{vT}")
        a(f"s_lshl_b32 s{sTmp2}, s{sTb}, 15")

        def dma_issue(first=False):
            r = []
            r.append(f"s_add_u32 s{sTmp}, s{sStart}, s{sLd}")
            r.append(f"s_lshl_b32 s{sDoff}, s{sTmp}, 6")
            r.append(f"s_cmp_lt_u32 s{sLd}, s{sN}")
            r.append(f"s_cselect_b32 s{sDoff}, s{sDoff}, {OOB}")
            r.append(f"s_and_b32 s{sTmp}, s{sLd}, 3")
            r.append(f"s_lshl_b32 s{sTmp}, s{sTmp}, 15")
            r.append(f"s_lshl_b32 s{sM0}, s{sWave}, 12")
            r.append(f"s_add_u32 m0, s{sM0}, s{sTmp}")
            r.append(f"s_add_u32 s{sLd}, s{sLd}, 1")
            for i in range(4):
                r.append(f"buffer_load_dwordx4 v{vDMA+i}, s[{sW}:{sW+3}], s{sDoff} offen offset:{i*1024} lds")
            return r
        a(f"s_mov_b32 s{sLd}, 0")
        a.ext(dma_issue())
        for ks in range(32):
            a(f"buffer_load_dwordx4 {vr(vA+4*ks,4)}, v{vT}, s[{sA}:{sA+3}], s{sTmp2} offen offset:{ks*32}")
        a.ext(dma_issue())
        a.ext(dma_issue())
        if kind in "QZ":
            s1 = [vT+2, vT+3]; s2 = [vT+4, vT+5]; one = vT + 6
            a(f"v_mov_b32 v{one}, 0x3f803f80")
            for x in s1 + s2: a(f"v_mov_b32 v{x}, 0")
            for ks in range(32):
                a(f"s_waitcnt vmcnt({8 + 31 - ks})")
                for j in range(4):
                    r = vA + 4*ks + j
                    a(f"v_dot2_f32_bf16 v{s1[j&1]}, v{r}, v{one}, v{s1[j&1]}")
                    a(f"v_dot2_f32_bf16 v{s2[j&1]}, v{r}, v{r}, v{s2[j&1]}")
            a("s_nop 2")
            a(f"v_add_f32 v{s1[0]}, v{s1[0]}, v{s1[1]}")
            a(f"v_add_f32 v{s2[0]}, v{s2[0]}, v{s2[1]}")
            a(f"v_mov_b32 v{s1[1]}, v{s1[0]}")
            a(f"v_mov_b32 v{s2[1]}, v{s2[0]}")
            a("s_nop 1")
            a(f"v_permlane32_swap_b32 v{s1[0]}, v{s1[1]}")
            a(f"v_permlane32_swap_b32 v{s2[0]}, v{s2[1]}")
            a("s_nop 1")
            a(f"v_add_f32 v{s1[0]}, v{s1[0]}, v{s1[1]}")
            a(f"v_add_f32 v{s2[0]}, v{s2[0]}, v{s2[1]}")
            mean, var, rr, nb = vT+7, vT+8, vT+9, vT+10
            a(f"v_mul_f32 v{mean}, {hexf(1/512)}, v{s1[0]}")
            a(f"v_mul_f32 v{var}, {hexf(1/512)}, v{s2[0]}")
            a(f"v_fma_f32 v{var}, -v{mean}, v{mean}, v{var}")
            a(f"v_max_f32 v{var}, 0, v{var}")
            a(f"v_add_f32 v{var}, {hexf(1e-5)}, v{var}")
            a(f"v_rsq_f32 v{rr}, v{var}")
            a("s_nop 0")
            if kind == "Q":
                a(f"v_mul_f32 v{rr}, {hexf(QSCALE)}, v{rr}")
            a(f"v_mul_f32 v{nb}, v{mean}, v{rr}")
            a(f"v_sub_f32 v{nb}, 0, v{nb}")
            for r in range(0, 128, 2):
                t = [vT+11, vT+12, vT+13, vT+14]
                a(f"v_lshlrev_b32 v{t[0]}, 16, v{vA+r}")
                a(f"v_and_b32 v{t[1]}, 0xffff0000, v{vA+r}")
                a(f"v_lshlrev_b32 v{t[2]}, 16, v{vA+r+1}")
                a(f"v_and_b32 v{t[3]}, 0xffff0000, v{vA+r+1}")
                for x in t: a(f"v_fma_f32 v{x}, v{x}, v{rr}, v{nb}")
                a(f"v_cvt_pk_bf16_f32 v{vA+r}, v{t[0]}, v{t[1]}")
                a(f"v_cvt_pk_bf16_f32 v{vA+r+1}, v{t[2]}, v{t[3]}")
        a("s_waitcnt vmcnt(0)")
        a("s_barrier")
        a(f"v_mov_b32 v{vRD[0]}, v{vRB}")
        a(f"v_add_u32 v{vRD[1]}, 32768, v{vRB}")

        def reads(step, p):
            q = p if step < 32 else 1 - p
            ks = step % 32
            f = vF + 4 * (step % R)
            return [f"ds_read_b64_tr_b16 {vr(f,2)}, v{vRD[q]} offset:{ks*1024}",
                    f"ds_read_b64_tr_b16 {vr(f+2,2)}, v{vRD[q]} offset:{ks*1024+256}"]
        for s in range(D):
            a.ext(reads(s, 0))
        a(f"s_mov_b32 s{sT}, 0")
        a(f"s_mov_b32 s{sOoff}, {OOB}")

        def epi(acc):
            r = []
            if kind == "Z":
                for h in range(0, 16, 4):
                    t = [vT + i for i in range(4)]
                    x = [acc + h + i for i in range(4)]
                    for i in range(4): r.append(f"v_mul_f32 v{t[i]}, v{x[i]}, v{x[i]}")
                    for i in range(4): r.append(f"v_fma_f32 v{t[i]}, v{t[i]}, s{sC2}, v{vT+15}")
                    for i in range(4): r.append(f"v_mul_f32 v{t[i]}, v{t[i]}, v{x[i]}")
                    for i in range(4): r.append(f"v_exp_f32 v{t[i]}, v{t[i]}")
                    for i in range(4): r.append(f"v_add_f32 v{t[i]}, 1.0, v{t[i]}")
                    for i in range(4): r.append(f"v_rcp_f32 v{t[i]}, v{t[i]}")
                    r.append(f"v_mul_f32 v{t[0]}, v{t[0]}, v{x[0]}")
                    r.append(f"v_mul_f32 v{t[1]}, v{t[1]}, v{x[1]}")
                    r.append(f"v_mul_f32 v{t[2]}, v{t[2]}, v{x[2]}")
                    r.append(f"v_mul_f32 v{t[3]}, v{t[3]}, v{x[3]}")
                    r.append(f"v_cvt_pk_bf16_f32 v{vPK+h//2}, v{t[0]}, v{t[1]}")
                    r.append(f"v_cvt_pk_bf16_f32 v{vPK+h//2+1}, v{t[2]}, v{t[3]}")
                    if h == 4:
                        r.append(f"buffer_store_dwordx4 {vr(vPK,4)}, v{vST}, s[{sO}:{sO+3}], s{sOoff} offen")
            else:
                for i in range(4):
                    r.append(f"v_cvt_pk_bf16_f32 v{vPK+i}, v{acc+2*i}, v{acc+2*i+1}")
                r.append(f"buffer_store_dwordx4 {vr(vPK,4)}, v{vST}, s[{sO}:{sO+3}], s{sOoff} offen")
                for i in range(4, 8):
                    r.append(f"v_cvt_pk_bf16_f32 v{vPK+i}, v{acc+2*i}, v{acc+2*i+1}")
            r.append(f"buffer_store_dwordx4 {vr(vPK+4,4)}, v{vST}, s[{sO}:{sO+3}], s{sOoff} offen offset:1024")
            return r
        def calc_ooff():
            r = [f"s_add_u32 s{sCt}, s{sStart}, s{sT}"]
            if kind == "Z":
                r.append(f"s_mul_i32 s{sOoff}, s{sTb}, {56*2048}")
                r.append(f"s_lshl_b32 s{sCt}, s{sCt}, 11")
                r.append(f"s_add_u32 s{sOoff}, s{sOoff}, s{sCt}")
            else:
                r.append(f"s_lshr_b32 s{sOoff}, s{sCt}, 2")
                r.append(f"s_lshl_b32 s{sOoff}, s{sOoff}, 19")
                r.append(f"s_and_b32 s{sCt}, s{sCt}, 3")
                r.append(f"s_lshl_b32 s{sCt}, s{sCt}, 11")
                r.append(f"s_add_u32 s{sOoff}, s{sOoff}, s{sCt}")
                r.append(f"s_lshl_b32 s{sCt}, s{sTb}, 13")
                r.append(f"s_add_u32 s{sOoff}, s{sOoff}, s{sCt}")
            return r
        if kind == "Z":
            a(f"v_mov_b32 v{vT+15}, s{sC1}")
        loop = f"L_k1_{kind}_loop"
        a.label(loop)
        for p in range(2):
            a("s_waitcnt vmcnt(8)")
            a("s_barrier")
            groups = []
            for ks in range(32):
                f = vF + 4 * (ks % R)
                c = "0" if ks == 0 else vr(vACC[p], 16)
                if kind == "V":
                    m = f"v_mfma_f32_32x32x16_bf16 {vr(vACC[p],16)}, {vr(vA+4*ks,4)}, {vr(f,4)}, {c}"
                else:
                    m = f"v_mfma_f32_32x32x16_bf16 {vr(vACC[p],16)}, {vr(f,4)}, {vr(vA+4*ks,4)}, {c}"
                g = [f"s_waitcnt lgkmcnt({2*(D-1)})", m] + reads(ks + D, p)
                if ks == 32 - D - 1:
                    g.append(f"v_xor_b32 v{vRD[p]}, 0x10000, v{vRD[p]}")
                groups.append(g)
            dma = dma_issue()
            ep = epi(vACC[1 - p])
            out = []
            fill_a = dma
            fill_b = ep
            post = calc_ooff()
            nb_gaps = 26
            k = 0
            for ks, g in enumerate(groups):
                out += g
                if ks == 0: out += fill_a[:10]
                elif ks < 4: out += [fill_a[9 + ks]]
                elif ks < 4 + nb_gaps:
                    tgt = (ks - 3) * len(fill_b) // nb_gaps
                    while k < tgt:
                        out.append(fill_b[k]); k += 1
                elif ks == 30:
                    out += post
            a.ext(out)
            a(f"s_add_u32 s{sT}, s{sT}, 1")
            a(f"s_cmp_ge_u32 s{sT}, s{sN}")
            a(f"s_cbranch_scc1 L_k1_{kind}_fin{p}")
        a(f"s_branch {loop}")
        for p in range(2):
            a.label(f"L_k1_{kind}_fin{p}")
            a("s_nop 15")
            a.ext(epi(vACC[p]))
            a("s_endpgm")
    a.label("L_k1_exit")
    a("s_endpgm")
    return nv
```

```python
from asmlib import *
from layout import *
LDS = 163840
OOB = 0x80000000
TH = float(2.0 ** 30)
NEG = -1e30

def gen_k2(a, name="k2_kernel"):
    D = 6; R = 8
    va = Alloc(1)
    vQ = va.get(32, 4); vO = va.get(64, 4)
    vS = [va.get(16, 4), va.get(16, 4)]
    vC = [va.get(16, 4), va.get(16, 4)]
    vP = [va.get(8, 4), va.get(8, 4)]
    vF = va.get(4 * R, 4)
    vE = va.get(8, 4)
    vTS = va.get(); vL = va.get(); vM = va.get()
    vRd = [va.get(), va.get()]
    vL16 = va.get(); vDq = va.get(); vNeg = va.get(); vLane = va.get()
    vT = va.get(8, 2)
    nv = va.p
    sKV, sQ, sCx, sZ, sZN = 8, 12, 16, 20, 24
    (sWave, sH, sQb, sQb2, sN, sPairs, sU, sU0, sLim, sLim2, sDi, sDbase, sDoff, sSlot, sW4k, sTmp, sTmp2, sQoff,
     sBlk, sKg, sQg, sCoff, sFree, sQoff2) = range(28, 52)
    sMk = 52

    a(f".globl {name}\n.p2align 8\n.type {name},@function")
    a.label(name)
    a("s_cmp_ge_u32 s2, 256")
    a("s_cbranch_scc1 L_k2_exit")
    a(f"s_load_dwordx2 s[4:5], s[0:1], {KA_WS}")
    a(f"v_lshrrev_b32 v{vT}, 6, v0")
    a(f"v_and_b32 v{vLane}, 63, v0")
    a(f"v_readfirstlane_b32 s{sWave}, v{vT}")
    a(f"v_lshlrev_b32 v{vL16}, 4, v{vLane}")
    a(f"s_and_b32 s{sTmp}, s2, 7")
    a(f"s_lshl_b32 s{sTmp}, s{sTmp}, 2")
    a(f"s_lshr_b32 s{sTmp2}, s2, 3")
    a(f"s_and_b32 s{sTmp2}, s{sTmp2}, 3")
    a(f"s_add_u32 s{sH}, s{sTmp}, s{sTmp2}")
    a(f"s_lshr_b32 s{sQb2}, s2, 5")
    a(f"s_sub_u32 s{sQb}, 15, s{sQb2}")
    a(f"s_and_b32 s{sQg}, s{sWave}, 3")
    a(f"s_lshr_b32 s{sKg}, s{sWave}, 2")
    a(f"s_lshl_b32 s{sW4k}, s{sWave}, 12")
    a(f"s_lshl_b32 s{sDbase}, s{sH}, 19")
    a(f"s_lshl_b32 s{sTmp}, s{sKg}, 24")
    a(f"s_add_u32 s{sDbase}, s{sDbase}, s{sTmp}")
    a(f"s_bfe_u32 s{sTmp}, s{sWave}, 0x10001")
    a(f"s_lshl_b32 s{sTmp}, s{sTmp}, 14")
    a(f"s_add_u32 s{sDbase}, s{sDbase}, s{sTmp}")
    a(f"s_and_b32 s{sTmp}, s{sWave}, 1")
    a(f"s_lshl_b32 s{sTmp}, s{sTmp}, 12")
    a(f"s_add_u32 s{sDbase}, s{sDbase}, s{sTmp}")
    a(f"s_lshl_b32 s{sTmp}, s{sKg}, 1")
    a(f"s_sub_u32 s{sU0}, 0, s{sTmp}")
    a(f"s_mov_b32 s{sU}, s{sU0}")
    a(f"s_lshl_b32 s{sLim}, s{sQb}, 1")
    a(f"s_add_u32 s{sLim}, s{sLim}, 2")
    a(f"s_lshl_b32 s{sLim2}, s{sQb2}, 1")
    a(f"s_add_u32 s{sLim2}, s{sLim2}, 2")
    a(f"s_mov_b32 s{sDi}, 0")
    a(f"s_mov_b32 s{sSlot}, 0")
    a(f"s_mov_b32 s{sBlk}, 0")
    a(f"s_lshl_b32 s{sTmp}, s{sKg}, 13")
    a(f"v_add_u32 v{vRd[0]}, s{sTmp}, v{vL16}")
    a(f"v_add_u32 v{vRd[1]}, 32768, v{vRd[0]}")
    a(f"v_and_b32 v{vDq}, 31, v{vLane}")
    a(f"s_lshl_b32 s{sTmp}, s{sQg}, 5")
    a(f"s_lshl_b32 s{sTmp2}, s{sKg}, 6")
    a(f"s_sub_u32 s{sTmp}, s{sTmp}, s{sTmp2}")
    a(f"v_add_u32 v{vDq}, s{sTmp}, v{vDq}")
    a(f"v_lshrrev_b32 v{vT}, 5, v{vLane}")
    a(f"v_lshlrev_b32 v{vT}, 2, v{vT}")
    a(f"v_sub_u32 v{vDq}, v{vDq}, v{vT}")
    a(f"v_mov_b32 v{vNeg}, {hexf(NEG)}")
    a("s_waitcnt lgkmcnt(0)")
    srd_off(a, sKV, 4, 5, WS_K, 32 * MB)
    srd_off(a, sQ, 4, 5, WS_Q, 16 * MB)
    srd_off(a, sCx, 4, 5, WS_CTX, 16 * MB)
    srd_off(a, sZ, 4, 5, WS_Z, 64 * 56 * 2048)
    srd_off(a, sZN, 4, 5, WS_Z2N, 2048 * 1792)

    def dma_issue():
        r = []
        r.append(f"s_lshr_b32 s{sTmp}, s{sU}, 1")
        r.append(f"s_lshl_b32 s{sTmp}, s{sTmp}, 15")
        r.append(f"s_and_b32 s{sTmp2}, s{sU}, 1")
        r.append(f"s_lshl_b32 s{sTmp2}, s{sTmp2}, 13")
        r.append(f"s_add_u32 s{sTmp}, s{sTmp}, s{sTmp2}")
        r.append(f"s_add_u32 s{sDoff}, s{sTmp}, s{sDbase}")
        r.append(f"s_cmp_lt_u32 s{sU}, s{sLim}")
        r.append(f"s_cselect_b32 s{sDoff}, s{sDoff}, {OOB}")
        r.append(f"s_add_u32 m0, s{sSlot}, s{sW4k}")
        r.append(f"s_add_u32 s{sSlot}, s{sSlot}, 32768")
        r.append(f"s_and_b32 s{sSlot}, s{sSlot}, 0x1ffff")
        r.append(f"s_add_u32 s{sU}, s{sU}, 1")
        r.append(f"s_add_u32 s{sDi}, s{sDi}, 1")
        r.append(f"s_add_u32 s{sTmp}, s{sLim}, 2")
        r.append(f"s_cmp_eq_u32 s{sDi}, s{sTmp}")
        r.append(f"s_cselect_b32 s{sU}, s{sU0}, s{sU}")
        r.append(f"s_cselect_b32 s{sDi}, 0, s{sDi}")
        r.append(f"s_cselect_b32 s{sLim}, s{sLim2}, s{sLim}")
        r.append(f"s_cselect_b32 s{sLim2}, 0, s{sLim2}")
        for i in range(4):
            r.append(f"buffer_load_dwordx4 v{vL16}, s[{sKV}:{sKV+3}], s{sDoff} offen offset:{i*1024} lds")
        return r
    def q_load(qb):
        r = [f"s_lshl_b32 s{sQoff}, s{sH}, 19",
             f"s_lshl_b32 s{sQoff2}, s{qb}, 2",
             f"s_add_u32 s{sQoff2}, s{sQoff2}, s{sQg}",
             f"s_lshl_b32 s{sQoff2}, s{sQoff2}, 13",
             f"s_add_u32 s{sQoff}, s{sQoff}, s{sQoff2}",
             f"s_add_u32 s{sQoff2}, s{sQoff}, 4096"]
        for ks in range(8):
            so = sQoff if ks < 4 else sQoff2
            r.append(f"buffer_load_dwordx4 {vr(vQ+4*ks,4)}, v{vL16}, s[{sQ}:{sQ+3}], s{so} offen offset:{(ks&3)*1024}")
        return r

    zr = vO
    a(f"v_lshrrev_b32 v{vT}, 4, v{vLane}")
    a(f"s_lshl_b32 s{sTmp}, s{sWave}, 3")
    a(f"v_add_u32 v{vT}, s{sTmp}, v{vT}")
    a(f"v_bfe_u32 v{vT+1}, v{vLane}, 3, 1")
    a(f"v_and_b32 v{vT+2}, 7, v{vLane}")
    a(f"v_lshlrev_b32 v{vT+3}, 10, v{vT}")
    a(f"v_lshl_add_u32 v{vT+3}, v{vT+1}, 9, v{vT+3}")
    a(f"v_lshl_add_u32 v{vT+3}, v{vT+2}, 4, v{vT+3}")
    a(f"v_add_u32 v{vT+5}, 4096, v{vT+3}")
    a(f"v_mul_u32_u24 v{vT+4}, 1792, v{vT+2}")
    a(f"v_lshl_add_u32 v{vT+4}, v{vT}, 5, v{vT+4}")
    a(f"v_lshl_add_u32 v{vT+4}, v{vT+1}, 4, v{vT+4}")
    a(f"s_lshr_b32 s{sTmp}, s2, 2")
    a(f"s_mul_i32 s{sTmp}, s{sTmp}, {56*2048}")
    a(f"s_and_b32 s{sTmp2}, s2, 3")
    a(f"s_lshl_b32 s{sTmp2}, s{sTmp2}, 7")
    a(f"s_add_u32 s{sTmp}, s{sTmp}, s{sTmp2}")
    a(f"s_add_u32 s{sTmp}, s{sTmp}, {28*2048}")
    a(f"s_mul_i32 s{sCoff}, s2, {8*1792}")
    a(f"s_cmp_lt_u32 s{sWave}, 7")
    a(f"s_cselect_b32 s{sTmp}, s{sTmp}, {OOB}")
    a(f"s_cselect_b32 s{sCoff}, s{sCoff}, {OOB}")
    a(f"buffer_load_dwordx4 {vr(zr,4)}, v{vT+3}, s[{sZ}:{sZ+3}], s{sTmp} offen")
    a(f"buffer_load_dwordx4 {vr(zr+4,4)}, v{vT+5}, s[{sZ}:{sZ+3}], s{sTmp} offen")
    a.ext(dma_issue())
    a.ext(q_load(sQb))
    a.ext(dma_issue())
    a.ext(dma_issue())
    s1, s2, one, t1, t2 = vO+8, vO+9, vO+10, vO+11, vO+12
    a(f"v_mov_b32 v{one}, 0x3f803f80")
    a(f"v_mov_b32 v{s1}, 0")
    a(f"v_mov_b32 v{s2}, 0")
    a("s_waitcnt vmcnt(20)")
    for i in range(8):
        a(f"v_dot2_f32_bf16 v{s1}, v{zr+i}, v{one}, v{s1}")
        a(f"v_dot2_f32_bf16 v{s2}, v{zr+i}, v{zr+i}, v{s2}")
    a("s_nop 2")
    a(f"v_add_f32_dpp v{s1}, v{s1}, v{s1} row_ror:8 row_mask:0xf bank_mask:0xf")
    a(f"v_add_f32_dpp v{s2}, v{s2}, v{s2} row_ror:8 row_mask:0xf bank_mask:0xf")
    for sw in ("v_permlane16_swap_b32", "v_permlane32_swap_b32"):
        a(f"v_mov_b32 v{t1}, v{s1}")
        a(f"v_mov_b32 v{t2}, v{s2}")
        a("s_nop 1")
        a(f"{sw} v{s1}, v{t1}")
        a(f"{sw} v{s2}, v{t2}")
        a("s_nop 1")
        a(f"v_add_f32 v{s1}, v{s1}, v{t1}")
        a(f"v_add_f32 v{s2}, v{s2}, v{t2}")
    a(f"v_lshlrev_b32 v{t1}, 3, v{vT+2}")
    a(f"v_add_u32 v{t1}, 131072, v{t1}")
    a(f"s_lshl_b32 s{sTmp}, s{sWave}, 6")
    a(f"v_add_u32 v{t2}, s{sTmp}, v{t1}")
    a(f"ds_write_b64 v{t2}, {vr(s1,2)}")
    a("s_waitcnt lgkmcnt(0)")
    a("s_barrier")
    for w in range(7):
        a(f"ds_read_b64 {vr(vO+16+2*w,2)}, v{t1} offset:{w*64}")
    a("s_waitcnt lgkmcnt(0)")
    for w in range(1, 7):
        a(f"v_add_f32 v{vO+16}, v{vO+16}, v{vO+16+2*w}")
        a(f"v_add_f32 v{vO+17}, v{vO+17}, v{vO+17+2*w}")
    mean, var, rr, nb = vO+32, vO+33, vO+34, vO+35
    a(f"v_mul_f32 v{mean}, {hexf(1/896)}, v{vO+16}")
    a(f"v_mul_f32 v{var}, {hexf(1/896)}, v{vO+17}")
    a(f"v_fma_f32 v{var}, -v{mean}, v{mean}, v{var}")
    a(f"v_max_f32 v{var}, 0, v{var}")
    a(f"v_add_f32 v{var}, {hexf(1e-5)}, v{var}")
    a(f"v_rsq_f32 v{rr}, v{var}")
    a("s_nop 0")
    a(f"v_mul_f32 v{nb}, v{mean}, v{rr}")
    a(f"v_sub_f32 v{nb}, 0, v{nb}")
    for i in range(8):
        a(f"v_lshlrev_b32 v{t1}, 16, v{zr+i}")
        a(f"v_and_b32 v{t2}, 0xffff0000, v{zr+i}")
        a(f"v_fma_f32 v{t1}, v{t1}, v{rr}, v{nb}")
        a(f"v_fma_f32 v{t2}, v{t2}, v{rr}, v{nb}")
        a(f"v_cvt_pk_bf16_f32 v{zr+i}, v{t1}, v{t2}")
    a(f"buffer_store_dwordx4 {vr(zr,4)}, v{vT+4}, s[{sZN}:{sZN+3}], s{sCoff} offen")
    a(f"buffer_store_dwordx4 {vr(zr+4,4)}, v{vT+4}, s[{sZN}:{sZN+3}], s{sCoff} offen offset:128")
    a("s_waitcnt vmcnt(2)")
    a("s_barrier")

    rare = []
    def frag_read(idx, m, q):
        off = m * 1024 if m < 8 else 16384 + (m - 8) * 1024
        f = vF + 4 * (idx % R)
        return f"ds_read_b128 {vr(f,4)}, v{vRd[q]} offset:{off}"
    def mfma(m, idx, p):
        f = vF + 4 * (idx % R)
        if m < 8:
            c = vr(vC[p], 16) if m == 0 else vr(vS[p], 16)
            return f"v_mfma_f32_32x32x16_bf16 {vr(vS[p],16)}, {vr(f,4)}, {vr(vQ+4*m,4)}, {c}"
        dt, k2 = (m - 8) >> 1, (m - 8) & 1
        return f"v_mfma_f32_32x32x16_bf16 {vr(vO+16*dt,16)}, {vr(f,4)}, {vr(vP[p]+4*k2,4)}, {vr(vO+16*dt,16)}"
    def sm(sb):
        S = vS[sb]; P = vP[sb]; r = []
        def post(k):
            e0, e1 = vE + (2*k) % 8, vE + (2*k+1) % 8
            x = []
            if k == 0:
                x.append(f"v_add_f32 v{vTS}, v{e0}, v{e1}")
            else:
                x.append(f"v_add_f32 v{vTS}, v{vTS}, v{e0}")
                x.append(f"v_add_f32 v{vTS}, v{vTS}, v{e1}")
            x.insert(1, f"v_cvt_pk_bf16_f32 v{P+k}, v{e0}, v{e1}")
            return x
        for k in range(8):
            r.append(f"v_exp_f32 v{vE+(2*k)%8}, v{S+2*k}")
            r.append(f"v_exp_f32 v{vE+(2*k+1)%8}, v{S+2*k+1}")
            if k > 0: r += post(k - 1)
        r.append("s_nop 0")
        r += post(7)
        return r
    def fixup(sb, has_next, init):
        S = vS[sb]; r = ["s_nop 15", "s_nop 3"]
        mx, t = vT, vT + 1
        r.append(f"v_max3_f32 v{mx}, v{S}, v{S+1}, v{S+2}")
        for i in range(3, 15, 2):
            r.append(f"v_max3_f32 v{mx}, v{mx}, v{S+i}, v{S+i+1}")
        r.append(f"v_max_f32 v{mx}, v{mx}, v{S+15}")
        r.append(f"v_mov_b32 v{t}, v{mx}")
        r.append("s_nop 1")
        r.append(f"v_permlane32_swap_b32 v{mx}, v{t}")
        r.append("s_nop 1")
        r.append(f"v_max_f32 v{mx}, v{mx}, v{t}")
        if init:
            r.append(f"v_mov_b32 v{vM}, v{mx}")
        else:
            r.append(f"v_max_f32 v{mx}, 0, v{mx}")
            r.append(f"v_exp_f32 v{t}, -v{mx}")
            r.append(f"v_add_f32 v{vM}, v{vM}, v{mx}")
            for i in range(64): r.append(f"v_mul_f32 v{vO+i}, v{vO+i}, v{t}")
            r.append(f"v_mul_f32 v{vL}, v{vL}, v{t}")
        for b in range(2):
            for i in range(16): r.append(f"v_sub_f32 v{vC[b]+i}, v{vC[b]+i}, v{mx}")
        for i in range(16): r.append(f"v_sub_f32 v{S+i}, v{S+i}, v{mx}")
        if has_next:
            for i in range(16): r.append(f"v_sub_f32 v{vS[1-sb]+i}, v{vS[1-sb]+i}, v{mx}")
        if not init:
            r += sm(sb)
        r.append("s_nop 1")
        return r
    def check(sb, has_next):
        lab = a.newlabel("k2rare"); ret = a.newlabel("k2ret")
        a(f"v_cmp_nge_f32 vcc, {hexf(TH)}, v{vTS}")
        a(f"s_cbranch_vccnz {lab}")
        a.label(ret)
        a(f"v_add_f32 v{vL}, v{vL}, v{vTS}")
        rare.append((lab, ret, sb, has_next))
    def mask_code():
        r = []
        items = [(s, i) for s in range(2) for i in range(16)]
        for g in range(0, 32, 3):
            grp = items[g:g+3]
            for j, (s, i) in enumerate(grp):
                cr = (i & 3) + 8 * (i >> 2) + 32 * s
                r.append(f"v_cmp_gt_i32 s[{sMk+2*j}:{sMk+2*j+1}], {cr}, v{vDq}")
            if len(grp) < 3: r.append("s_nop 1")
            for j, (s, i) in enumerate(grp):
                r.append(f"v_cndmask_b32 v{vC[s]+i}, v{vC[s]+i}, v{vNeg}, s[{sMk+2*j}:{sMk+2*j+1}]")
        r.append("s_nop 1")
        return r

    def body(p, qk, pv, dosm, pre, nxt, extra=()):
        ms = (list(range(8)) if qk else []) + (list(range(8, 16)) if pv else [])
        assert len(ms) % R == 0
        seq = [(m, p) for m in ms] + [(m, 1 - p) for m in nxt[:D]]
        a("s_waitcnt vmcnt(4)")
        a("s_barrier")
        issued = pre
        if pre == 0:
            a("s_waitcnt lgkmcnt(0)")
            for i in range(D):
                a(frag_read(i, seq[i][0], seq[i][1]))
            issued = D
        groups = []
        for i, m in enumerate(ms):
            g = [f"s_waitcnt lgkmcnt({issued - i - 1})", mfma(m, i, p)]
            if issued < len(seq):
                g.append(frag_read(issued, seq[issued][0], seq[issued][1]))
                issued += 1
                if issued == len(ms):
                    g.append(f"v_xor_b32 v{vRd[p]}, 0x10000, v{vRd[p]}")
            groups.append(g)
        dma = dma_issue()
        fill = list(extra) + (sm(1 - p) if dosm else [])
        out = []
        n = len(groups); k = 0
        for i, g in enumerate(groups):
            out += g
            if i == 0: out += dma[:11]
            elif i == 1: out += dma[11:20]
            elif i < 5: out += [dma[18 + i]]
            tgt = (i + 1) * len(fill) // n
            while k < tgt:
                out.append(fill[k]); k += 1
        a.ext(out)

    KF = list(range(8)); VF = list(range(8, 16))
    a.label("L_k2_block")
    a(f"s_add_u32 s{sPairs}, s{sQb}, 1")
    for i in range(64): a(f"v_mov_b32 v{vO+i}, 0")
    for b in range(2):
        for i in range(16): a(f"v_mov_b32 v{vC[b]+i}, 0")
    a(f"v_mov_b32 v{vL}, 0")
    a(f"s_cmp_lg_u32 s{sPairs}, 1")
    a("s_cbranch_scc1 L_k2_nomask0")
    a.ext(mask_code())
    a.label("L_k2_nomask0")
    body(0, True, False, False, 0, KF)
    a.ext(fixup(0, False, True))
    body(1, True, False, True, D, KF)
    check(0, True)
    a(f"s_sub_u32 s{sPairs}, s{sPairs}, 1")
    a(f"s_cmp_eq_u32 s{sPairs}, 0")
    a("s_cbranch_scc1 L_k2_drain")
    a.label("L_k2_loop")
    a(f"s_cmp_lg_u32 s{sPairs}, 1")
    a("s_cbranch_scc1 L_k2_nomask1")
    a.ext(mask_code())
    a.label("L_k2_nomask1")
    body(0, True, True, True, D, KF)
    check(1, True)
    body(1, True, True, True, D, KF)
    check(0, True)
    a(f"s_sub_u32 s{sPairs}, s{sPairs}, 1")
    a(f"s_cmp_lg_u32 s{sPairs}, 0")
    a("s_cbranch_scc1 L_k2_loop")
    a.label("L_k2_drain")
    body(0, False, True, True, 0, VF, extra=q_load(sQb2))
    check(1, False)
    body(1, False, True, False, D, [])
    a(f"v_mov_b32 v{vT}, v{vL}")
    a("s_nop 1")
    a(f"v_permlane32_swap_b32 v{vL}, v{vT}")
    a("s_nop 1")
    a(f"v_add_f32 v{vT+1}, v{vL}, v{vT}")
    a(f"v_mov_b32 v{vT}, v{vM}")
    a(f"v_lshrrev_b32 v{vT+2}, 1, v{vL16}")
    a(f"s_lshl_b32 s{sTmp}, s{sWave}, 9")
    a(f"s_add_u32 s{sTmp}, s{sTmp}, 131072")
    a(f"v_add_u32 v{vT+3}, s{sTmp}, v{vT+2}")
    a(f"ds_write_b64 v{vT+3}, {vr(vT,2)}")
    a(f"v_xor_b32 v{vT+3}, 2048, v{vT+3}")
    a("s_waitcnt lgkmcnt(0)")
    a("s_barrier")
    a(f"ds_read_b64 {vr(vT+4,2)}, v{vT+3}")
    a("s_waitcnt lgkmcnt(0)")
    a("s_barrier")
    a(f"v_max_f32 v{vT+2}, v{vT}, v{vT+4}")
    a(f"v_sub_f32 v{vT}, v{vT}, v{vT+2}")
    a(f"v_sub_f32 v{vT+4}, v{vT+4}, v{vT+2}")
    a(f"v_exp_f32 v{vT}, v{vT}")
    a(f"v_exp_f32 v{vT+4}, v{vT+4}")
    a("s_nop 0")
    a(f"v_mul_f32 v{vT+1}, v{vT+1}, v{vT}")
    a(f"v_fma_f32 v{vT+1}, v{vT+5}, v{vT+4}, v{vT+1}")
    a(f"v_rcp_f32 v{vT+1}, v{vT+1}")
    a("s_nop 0")
    a(f"v_mul_f32 v{vT}, v{vT}, v{vT+1}")
    for i in range(64): a(f"v_mul_f32 v{vO+i}, v{vO+i}, v{vT}")
    a(f"s_lshl_b32 s{sTmp}, s{sQg}, 13")
    a(f"s_add_u32 s{sTmp2}, s{sTmp}, 131072")
    a(f"s_add_u32 s{sTmp}, s{sTmp}, s{sSlot}")
    a(f"s_cmp_eq_u32 s{sKg}, 0")
    a(f"s_cselect_b32 s{sFree}, s{sTmp2}, s{sTmp}")
    a(f"s_cselect_b32 s{sTmp}, s{sTmp}, s{sTmp2}")
    a(f"v_add_u32 v{vT+2}, s{sFree}, v{vL16}")
    a(f"v_add_u32 v{vT+3}, s{sTmp}, v{vL16}")
    a(f"s_lshl_b32 s{sCoff}, s{sQb}, 2")
    a(f"s_add_u32 s{sCoff}, s{sCoff}, s{sQg}")
    a(f"s_lshl_b32 s{sCoff}, s{sCoff}, 18")
    a(f"s_lshl_b32 s{sTmp}, s{sH}, 13")
    a(f"s_add_u32 s{sCoff}, s{sCoff}, s{sTmp}")
    a(f"s_lshl_b32 s{sTmp}, s{sKg}, 12")
    a(f"s_add_u32 s{sCoff}, s{sCoff}, s{sTmp}")
    a(f"s_cmp_eq_u32 s{sKg}, 0")
    a("s_cbranch_scc0 L_k2_mrg1")
    for kg in range(2):
        if kg == 1: a.label("L_k2_mrg1")
        send = vO + (32 if kg == 0 else 0); keep = vO + (0 if kg == 0 else 32)
        for i in range(8):
            a(f"ds_write_b128 v{vT+2}, {vr(send+4*i,4)} offset:{i*1024}")
        a("s_waitcnt lgkmcnt(0)")
        a("s_barrier")
        for i in range(8):
            a(f"ds_read_b128 {vr(send+4*i,4)}, v{vT+3} offset:{i*1024}")
        for i in range(4):
            a(f"s_waitcnt lgkmcnt({6-2*i})")
            for j in range(8):
                a(f"v_add_f32 v{keep+8*i+j}, v{keep+8*i+j}, v{send+8*i+j}")
            for j in range(4):
                a(f"v_cvt_pk_bf16_f32 v{vS[0]+4*i+j}, v{keep+8*i+2*j}, v{keep+8*i+2*j+1}")
            a(f"buffer_store_dwordx4 {vr(vS[0]+4*i,4)}, v{vL16}, s[{sCx}:{sCx+3}], s{sCoff} offen offset:{i*1024}")
        if kg == 0: a("s_branch L_k2_mrgdone")
    a.label("L_k2_mrgdone")
    a(f"s_mov_b32 s{sQb}, s{sQb2}")
    a(f"s_add_u32 s{sBlk}, s{sBlk}, 1")
    a(f"s_cmp_lt_u32 s{sBlk}, 2")
    a("s_cbranch_scc1 L_k2_block")
    a.label("L_k2_exit")
    a("s_endpgm")
    for (lab, ret, sb, has_next) in rare:
        a.label(lab)
        a.ext(fixup(sb, has_next, False))
        a(f"s_branch {ret}")
    return nv
```

```python
from asmlib import *
from layout import *
GRID, BLOCK, LDS = 256, 512, 131072
OOB = 0x80000000

def gen_k3(a, name="k3_kernel"):
    va = Alloc(1)
    vAcc = va.get(64, 4)
    vF = va.get(64, 4)
    vZ1 = va.get(16, 4)
    vXa = [[va.get(), va.get()], [va.get(), va.get()]]
    vWa = [[va.get(), va.get()], [va.get(), va.get()]]
    vDX = [va.get(), va.get()]; vDW = [va.get(), va.get()]
    vL16 = va.get(); vLane = va.get(); vB = va.get()
    vT = va.get(8, 2)
    nv = va.p
    sX, sW, sO, sZ, sBi = 20, 24, 28, 32, 36
    (sWave, sKg, sWm, sWn, sRb, sCol, sSplit, sXoff, sWoff, sSlot, sW4k, sIt, sLd, sTmp, sTmp2, sXo, sWo, sTb, sOoff) = range(40, 59)

    a(f".globl {name}\n.p2align 8\n.type {name},@function")
    a.label(name)
    a("s_cmp_ge_u32 s2, 256")
    a("s_cbranch_scc1 L_k3_exit")
    a(f"s_load_dwordx2 s[4:5], s[0:1], {KA_WS}")
    a(f"s_load_dwordx2 s[6:7], s[0:1], {KA_WO}")
    a(f"s_load_dwordx4 s[8:11], s[0:1], {KA_WSP}")
    a(f"v_lshrrev_b32 v{vT}, 6, v0")
    a(f"v_and_b32 v{vLane}, 63, v0")
    a(f"v_readfirstlane_b32 s{sWave}, v{vT}")
    a(f"v_lshlrev_b32 v{vL16}, 4, v{vLane}")
    a(f"s_lshr_b32 s{sKg}, s{sWave}, 2")
    a(f"s_and_b32 s{sWm}, s{sWave}, 1")
    a(f"s_bfe_u32 s{sWn}, s{sWave}, 0x10001")
    a(f"s_lshl_b32 s{sW4k}, s{sWave}, 12")
    a(f"s_and_b32 s{sTmp}, s2, 7")
    a(f"s_lshr_b32 s{sTmp2}, s2, 3")
    a("s_waitcnt lgkmcnt(0)")
    a(f"s_cmp_lt_u32 s{sTmp}, 4")
    a("s_cbranch_scc1 L_k3_O")
    a(f"s_cmp_ge_u32 s{sTmp2}, 28")
    a("s_cbranch_scc1 L_k3_exit")

    for kind in "SO":
        a.label(f"L_k3_{kind}")
        if kind == "S":
            wrs = 1792
            a(f"s_mul_i32 s{sRb}, s{sTmp2}, 37")
            a(f"s_lshr_b32 s{sRb}, s{sRb}, 8")
            a(f"s_mul_i32 s{sCol}, s{sRb}, 7")
            a(f"s_sub_u32 s{sCol}, s{sTmp2}, s{sCol}")
            a(f"s_sub_u32 s{sTmp}, s{sTmp}, 4")
            a(f"s_lshl_b32 s{sTmp}, s{sTmp}, 2")
            a(f"s_add_u32 s{sRb}, s{sRb}, s{sTmp}")
            srd(a, sX, 8, 9, 2048 * 4096)
            srd_off(a, sW, 4, 5, WS_Z2N, 2048 * 1792)
            srd_off(a, sO, 4, 5, WS_H, 64 * 56 * 1024)
            srd_off(a, sZ, 4, 5, WS_Z, 64 * 56 * 2048)
            srd(a, sBi, 10, 11, 4096)
            a(f"s_lshl_b32 s{sXoff}, s{sRb}, 19")
            a(f"s_lshl_b32 s{sWoff}, s{sCol}, 8")
            xstep, wstep = 128, 64 * wrs
            for i in range(2):
                a(f"v_lshrrev_b32 v{vT}, 3, v{vLane}")
                a(f"s_lshl_b32 s{sTmp}, s{sWave}, 4")
                a(f"s_add_u32 s{sTmp}, s{sTmp}, {8*i}")
                a(f"v_add_u32 v{vT}, s{sTmp}, v{vT}")
                a(f"v_bfe_u32 v{vT+1}, v{vT}, 1, 3")
                a(f"v_and_b32 v{vT+2}, 7, v{vLane}")
                a(f"v_xor_b32 v{vT+1}, v{vT+1}, v{vT+2}")
                a(f"v_lshlrev_b32 v{vT}, 12, v{vT}")
                a(f"v_lshl_add_u32 v{vDX[i]}, v{vT+1}, 4, v{vT}")
            a(f"v_subrev_u32 v{vDX[1]}, 1024, v{vDX[1]}")
            for ksl in range(2):
                a(f"v_and_b32 v{vT}, 31, v{vLane}")
                a(f"v_lshrrev_b32 v{vT+1}, 4, v{vT}")
                a(f"v_lshlrev_b32 v{vT+1}, 12, v{vT+1}")
                a(f"v_and_b32 v{vT+2}, 15, v{vT}")
                a(f"v_lshl_add_u32 v{vT+1}, v{vT+2}, 7, v{vT+1}")
                a(f"v_bfe_u32 v{vT+2}, v{vT}, 1, 3")
                a(f"v_lshrrev_b32 v{vT+3}, 5, v{vLane}")
                a(f"s_lshl_b32 s{sTmp}, s{sKg}, 2")
                a(f"s_add_u32 s{sTmp}, s{sTmp}, {2*ksl}")
                a(f"v_add_u32 v{vT+3}, s{sTmp}, v{vT+3}")
                a(f"v_xor_b32 v{vT+2}, v{vT+2}, v{vT+3}")
                a(f"v_lshl_add_u32 v{vT+1}, v{vT+2}, 4, v{vT+1}")
                a(f"s_lshl_b32 s{sTmp}, s{sWm}, 14")
                a(f"v_add_u32 v{vXa[0][ksl]}, s{sTmp}, v{vT+1}")
        else:
            wrs = 1024
            a(f"s_lshr_b32 s{sSplit}, s{sTmp}, 1")
            a(f"s_and_b32 s{sRb}, s{sTmp}, 1")
            a(f"s_lshl_b32 s{sRb}, s{sRb}, 3")
            a(f"s_lshr_b32 s{sTmp}, s{sTmp2}, 2")
            a(f"s_add_u32 s{sRb}, s{sRb}, s{sTmp}")
            a(f"s_and_b32 s{sCol}, s{sTmp2}, 3")
            srd_off(a, sX, 4, 5, WS_CTX, 16 * MB)
            srd(a, sW, 6, 7, 4096 * 1024)
            srd_off(a, sO, 4, 5, WS_P, 8 * MB)
            a(f"s_lshl_b32 s{sXoff}, s{sRb}, 20")
            a(f"s_lshl_b32 s{sTmp}, s{sSplit}, 17")
            a(f"s_add_u32 s{sXoff}, s{sXoff}, s{sTmp}")
            a(f"s_lshl_b32 s{sWoff}, s{sCol}, 8")
            a(f"s_lshl_b32 s{sTmp}, s{sSplit}, 21")
            a(f"s_add_u32 s{sWoff}, s{sWoff}, s{sTmp}")
            xstep, wstep = 4096, 64 * wrs
            a(f"s_lshr_b32 s{sTmp}, s{sWave}, 1")
            a(f"s_lshl_b32 s{sTmp}, s{sTmp}, 18")
            a(f"s_lshl_b32 s{sTmp2}, s{sWm}, 11")
            a(f"s_add_u32 s{sTmp}, s{sTmp}, s{sTmp2}")
            a(f"v_add_u32 v{vDX[0]}, s{sTmp}, v{vL16}")
            a(f"v_mov_b32 v{vDX[1]}, v{vDX[0]}")
            a(f"s_lshl_b32 s{sTmp}, s{sWm}, 14")
            a(f"s_lshl_b32 s{sTmp2}, s{sKg}, 12")
            a(f"s_add_u32 s{sTmp}, s{sTmp}, s{sTmp2}")
            a(f"v_add_u32 v{vXa[0][0]}, s{sTmp}, v{vL16}")
            a(f"v_add_u32 v{vXa[0][1]}, 1024, v{vXa[0][0]}")
        a(f"v_lshrrev_b32 v{vT}, 4, v{vLane}")
        a(f"v_lshlrev_b32 v{vT+1}, 2, v{vT}")
        a(f"v_and_b32 v{vT+2}, 15, v{vLane}")
        a(f"v_xor_b32 v{vT+1}, v{vT+1}, v{vT+2}")
        a(f"s_lshl_b32 s{sTmp}, s{sWave}, 3")
        a(f"v_add_u32 v{vT}, s{sTmp}, v{vT}")
        a(f"v_mul_u32_u24 v{vT}, {wrs}, v{vT}")
        a(f"v_lshl_add_u32 v{vDW[0]}, v{vT+1}, 4, v{vT}")
        a(f"v_add_u32 v{vDW[1]}, {4*wrs - 1024}, v{vDW[0]}")
        a(f"s_sub_u32 s{sW}, s{sW}, 2048")
        a(f"s_subb_u32 s{sW+1}, s{sW+1}, 0")
        a(f"s_add_u32 s{sW+2}, s{sW+2}, 2048")
        for nb in range(2):
            a(f"v_bfe_u32 v{vT}, v{vLane}, 2, 2")
            a(f"v_lshlrev_b32 v{vT+1}, 8, v{vT}")
            a(f"s_lshl_b32 s{sTmp}, s{sWn}, 1")
            a(f"s_add_u32 s{sTmp}, s{sTmp}, {nb}")
            a(f"v_xor_b32 v{vT}, s{sTmp}, v{vT}")
            a(f"v_lshl_add_u32 v{vT+1}, v{vT}, 6, v{vT+1}")
            a(f"v_bfe_u32 v{vT}, v{vLane}, 4, 1")
            a(f"v_lshl_add_u32 v{vT+1}, v{vT}, 5, v{vT+1}")
            if kind == "S":
                a(f"v_and_b32 v{vT}, 1, v{vLane}")
                a(f"v_lshl_add_u32 v{vT+1}, v{vT}, 4, v{vT+1}")
                a(f"v_bfe_u32 v{vT}, v{vLane}, 1, 1")
                a(f"v_lshl_add_u32 v{vT+1}, v{vT}, 3, v{vT+1}")
            else:
                a(f"v_and_b32 v{vT}, 3, v{vLane}")
                a(f"v_lshl_add_u32 v{vT+1}, v{vT}, 3, v{vT+1}")
            a(f"v_lshrrev_b32 v{vT}, 5, v{vLane}")
            a(f"v_lshl_add_u32 v{vT+1}, v{vT}, {12 if kind == 'S' else 10}, v{vT+1}")
            a(f"s_lshl_b32 s{sTmp}, s{sKg}, 14")
            a(f"s_add_u32 s{sTmp}, s{sTmp}, 2048")
            a(f"v_add_u32 v{vWa[0][nb]}, s{sTmp}, v{vT+1}")
        poff = 1024 if kind == "S" else 4096
        for i in range(2):
            a(f"v_add_u32 v{vXa[1][i]}, 0x10000, v{vXa[0][i]}")
            a(f"v_add_u32 v{vWa[1][i]}, 0x10000, v{vWa[0][i]}")
        a(f"s_lshl_b32 s{sTb}, s{sRb}, 2")
        a(f"s_lshl_b32 s{sTmp}, s{sWm}, 1")
        a(f"s_add_u32 s{sTb}, s{sTb}, s{sTmp}")
        a(f"s_add_u32 s{sTb}, s{sTb}, s{sKg}")
        if kind == "S":
            a(f"s_lshl_b32 s{sTmp}, s{sCol}, 2")
            a(f"s_lshl_b32 s{sTmp2}, s{sWn}, 1")
            a(f"s_add_u32 s{sTmp}, s{sTmp}, s{sTmp2}")
            a(f"s_lshl_b32 s{sTmp}, s{sTmp}, 11")
            a(f"s_mul_i32 s{sOoff}, s{sTb}, {56*1024}")
            a(f"s_add_u32 s{sOoff}, s{sOoff}, s{sTmp}")
            a(f"s_mul_i32 s{sTmp2}, s{sTb}, {56*2048}")
            a(f"s_add_u32 s{sTmp2}, s{sTmp2}, s{sTmp}")
            for i in range(4):
                a(f"buffer_load_dwordx4 {vr(vZ1+4*i,4)}, v{vL16}, s[{sZ}:{sZ+3}], s{sTmp2} offen offset:{i*1024}")
            a(f"v_and_b32 v{vT}, 31, v{vLane}")
            a(f"v_lshlrev_b32 v{vT}, 1, v{vT}")
            a(f"s_lshl_b32 s{sTmp}, s{sTb}, 6")
            a(f"buffer_load_ushort v{vB}, v{vT}, s[{sBi}:{sBi+3}], s{sTmp} offen")
        else:
            a(f"s_lshl_b32 s{sOoff}, s{sSplit}, 22")
            a(f"s_lshl_b32 s{sTmp}, s{sTb}, 16")
            a(f"s_add_u32 s{sOoff}, s{sOoff}, s{sTmp}")
            a(f"s_lshl_b32 s{sTmp}, s{sCol}, 14")
            a(f"s_add_u32 s{sOoff}, s{sOoff}, s{sTmp}")
            a(f"s_lshl_b32 s{sTmp}, s{sWn}, 13")
            a(f"s_add_u32 s{sOoff}, s{sOoff}, s{sTmp}")

        def dma_issue(slot):
            r = [f"s_cmp_lt_u32 s{sLd}, 32",
                 f"s_cselect_b32 s{sXo}, s{sXoff}, {OOB}",
                 f"s_cselect_b32 s{sWo}, s{sWoff}, {OOB}",
                 f"s_add_u32 m0, s{sW4k}, {slot*32768}",
                 f"s_add_u32 s{sXoff}, s{sXoff}, {xstep}",
                 f"s_add_u32 s{sWoff}, s{sWoff}, {wstep}",
                 f"s_add_u32 s{sLd}, s{sLd}, 1"]
            r.append(f"buffer_load_dwordx4 v{vDX[0]}, s[{sX}:{sX+3}], s{sXo} offen lds")
            r.append(f"buffer_load_dwordx4 v{vDX[1]}, s[{sX}:{sX+3}], s{sXo} offen offset:1024 lds")
            r.append(f"buffer_load_dwordx4 v{vDW[0]}, s[{sW}:{sW+3}], s{sWo} offen offset:2048 lds")
            r.append(f"buffer_load_dwordx4 v{vDW[1]}, s[{sW}:{sW+3}], s{sWo} offen offset:3072 lds")
            return r
        a(f"s_mov_b32 s{sLd}, 0")
        for s in range(3): a.ext(dma_issue(s))
        for i in range(64): a(f"v_mov_b32 v{vAcc+i}, 0")
        def reads(step):
            step %= 8
            slot, ksl = step >> 1, step & 1
            hi = slot >> 1; so = (slot & 1) * 32768
            f = vF + 16 * (step % 4)
            r = [f"ds_read_b128 {vr(f,4)}, v{vXa[hi][ksl]} offset:{so}"]
            r.append(f"ds_read_b64_tr_b16 {vr(f+8,2)}, v{vWa[hi][0]} offset:{so + ksl*8192}")
            r.append(f"ds_read_b64_tr_b16 {vr(f+10,2)}, v{vWa[hi][0]} offset:{so + ksl*8192 + poff}")
            r.append(f"ds_read_b64_tr_b16 {vr(f+12,2)}, v{vWa[hi][1]} offset:{so + ksl*8192}")
            r.append(f"ds_read_b64_tr_b16 {vr(f+14,2)}, v{vWa[hi][1]} offset:{so + ksl*8192 + poff}")
            r.append(f"ds_read_b128 {vr(f+4,4)}, v{vXa[hi][ksl]} offset:{so + 8192}")
            return r
        a("s_waitcnt vmcnt(8)")
        a("s_barrier")
        a.ext(reads(0)); a.ext(reads(1))
        a(f"s_mov_b32 s{sIt}, 0")
        a.label(f"L_k3_{kind}_loop")
        for st in range(4):
            a("s_waitcnt vmcnt(4)")
            a("s_barrier")
            dma = dma_issue((st + 3) & 3)
            for ksl in range(2):
                step = 2 * st + ksl
                f = vF + 16 * (step % 4)
                rd = reads(step + 2)
                def mm(tb2, nb):
                    acc = vAcc + 32 * tb2 + 16 * nb
                    return f"v_mfma_f32_32x32x16_bf16 {vr(acc,16)}, {vr(f+8+4*nb,4)}, {vr(f+4*tb2,4)}, {vr(acc,16)}"
                a("s_waitcnt lgkmcnt(9)")
                a(mm(0, 0)); a.ext(rd[0:2])
                if ksl == 0: a.ext(dma[:8])
                a("s_waitcnt lgkmcnt(9)")
                a(mm(0, 1)); a.ext(rd[2:4])
                if ksl == 0: a(dma[8])
                a("s_waitcnt lgkmcnt(10)")
                a(mm(1, 0)); a.ext(rd[4:6])
                if ksl == 0: a(dma[9])
                a(mm(1, 1))
                if ksl == 0: a(dma[10])
        a(f"s_add_u32 s{sIt}, s{sIt}, 1")
        a(f"s_cmp_lt_u32 s{sIt}, 8")
        a(f"s_cbranch_scc1 L_k3_{kind}_loop")
        a("s_waitcnt vmcnt(0) lgkmcnt(0)")
        a("s_barrier")
        a(f"s_lshl_b32 s{sTmp}, s{sWave}, 13")
        a(f"v_add_u32 v{vT}, s{sTmp}, v{vL16}")
        a(f"v_xor_b32 v{vT+1}, 0x8000, v{vT}")
        a("s_nop 7")
        a(f"s_cmp_eq_u32 s{sKg}, 0")
        a(f"s_cbranch_scc0 L_k3_{kind}_e1")
        for kg in range(2):
            if kg == 1: a.label(f"L_k3_{kind}_e1")
            send = vAcc + (32 if kg == 0 else 0); keep = vAcc + (0 if kg == 0 else 32)
            for i in range(8):
                a(f"ds_write_b128 v{vT}, {vr(send+4*i,4)} offset:{i*1024}")
            a("s_waitcnt lgkmcnt(0)")
            a("s_barrier")
            for i in range(8):
                a(f"ds_read_b128 {vr(send+4*i,4)}, v{vT+1} offset:{i*1024}")
            if kind == "S":
                a(f"v_lshlrev_b32 v{vB}, 16, v{vB}")
                a(f"s_add_u32 s{sTmp}, s{sOoff}, 0")
            for i in range(4):
                a(f"s_waitcnt lgkmcnt({6-2*i})")
                for j in range(8):
                    a(f"v_add_f32 v{keep+8*i+j}, v{keep+8*i+j}, v{send+8*i+j}")
                if kind == "S":
                    for j in range(8):
                        a(f"v_add_f32 v{keep+8*i+j}, v{keep+8*i+j}, v{vB}")
                    for j in range(4):
                        a(f"v_lshlrev_b32 v{vT+2}, 16, v{vZ1+4*i+j}")
                        a(f"v_and_b32 v{vT+3}, 0xffff0000, v{vZ1+4*i+j}")
                        a(f"v_mul_f32 v{vT+2}, v{vT+2}, v{keep+8*i+2*j}")
                        a(f"v_mul_f32 v{vT+3}, v{vT+3}, v{keep+8*i+2*j+1}")
                        a(f"v_cvt_pk_bf16_f32 v{vZ1+4*i+j}, v{vT+2}, v{vT+3}")
                    a(f"buffer_store_dwordx4 {vr(vZ1+4*i,4)}, v{vL16}, s[{sO}:{sO+3}], s{sOoff} offen offset:{i*1024}")
                else:
                    if i == 2: a(f"s_add_u32 s{sOoff}, s{sOoff}, 4096")
                    a(f"buffer_store_dwordx4 {vr(keep+8*i,4)}, v{vL16}, s[{sO}:{sO+3}], s{sOoff} offen offset:{(2*i&3)*1024}")
                    a(f"buffer_store_dwordx4 {vr(keep+8*i+4,4)}, v{vL16}, s[{sO}:{sO+3}], s{sOoff} offen offset:{((2*i+1)&3)*1024}")
            a("s_endpgm")
    a.label("L_k3_exit")
    a("s_endpgm")
    return nv
```

```python
from asmlib import *
from layout import *
GRID, BLOCK, LDS = 256, 512, 163840

def gen_k4(a, name="k4_kernel"):
    va = Alloc(1)
    vAcc = va.get(16, 4)
    vF = va.get(64, 4)
    vX = va.get(4, 4)
    vXa = va.get(); vWa = va.get()
    vDX = va.get(); vDW = [va.get(), va.get()]
    vL16 = va.get(); vLane = va.get(); vOo = va.get()
    vT = va.get(8, 2)
    nv = va.p
    sX, sW, sO, sP, sXi = 20, 24, 28, 32, 36
    (sWave, sKg, sWm, sWn, sRb, sCol, sXoff, sWoff, sW4k, sTmp, sTmp2, sOoff) = range(40, 52)
    a(f".globl {name}\n.p2align 8\n.type {name},@function")
    a.label(name)
    a("s_cmp_ge_u32 s2, 256")
    a("s_cbranch_scc1 L_k4_exit")
    a(f"s_load_dwordx2 s[4:5], s[0:1], {KA_WS}")
    a(f"s_load_dwordx4 s[8:11], s[0:1], {KA_WOUT}")
    a(f"s_load_dwordx2 s[6:7], s[0:1], {KA_X}")
    a(f"v_lshrrev_b32 v{vT}, 6, v0")
    a(f"v_and_b32 v{vLane}, 63, v0")
    a(f"v_readfirstlane_b32 s{sWave}, v{vT}")
    a(f"v_lshlrev_b32 v{vL16}, 4, v{vLane}")
    a(f"s_lshr_b32 s{sKg}, s{sWave}, 2")
    a(f"s_and_b32 s{sWm}, s{sWave}, 1")
    a(f"s_bfe_u32 s{sWn}, s{sWave}, 0x10001")
    a(f"s_lshl_b32 s{sW4k}, s{sWave}, 12")
    a(f"s_and_b32 s{sRb}, s2, 7")
    a(f"s_lshl_b32 s{sRb}, s{sRb}, 2")
    a(f"s_bfe_u32 s{sTmp}, s2, 0x20003")
    a(f"s_add_u32 s{sRb}, s{sRb}, s{sTmp}")
    a(f"s_lshr_b32 s{sCol}, s2, 5")
    a(f"s_mul_i32 s{sTmp}, s{sKg}, {56*1024}")
    a(f"s_and_b32 s{sTmp2}, s{sWave}, 3")
    a(f"s_lshl_b32 s{sTmp2}, s{sTmp2}, 11")
    a(f"s_add_u32 s{sTmp}, s{sTmp}, s{sTmp2}")
    a(f"v_add_u32 v{vDX}, s{sTmp}, v{vL16}")
    a(f"s_mul_i32 s{sXoff}, s{sRb}, {2*56*1024}")
    a(f"v_lshrrev_b32 v{vT}, 3, v{vLane}")
    a(f"s_lshl_b32 s{sTmp}, s{sWave}, 4")
    a(f"v_add_u32 v{vT}, s{sTmp}, v{vT}")
    a(f"v_lshlrev_b32 v{vT}, 10, v{vT}")
    a(f"v_bfe_u32 v{vT+1}, v{vLane}, 4, 1")
    a(f"v_lshlrev_b32 v{vT+1}, 2, v{vT+1}")
    a(f"v_and_b32 v{vT+2}, 7, v{vLane}")
    a(f"v_xor_b32 v{vT+1}, v{vT+1}, v{vT+2}")
    a(f"v_lshl_add_u32 v{vDW[0]}, v{vT+1}, 4, v{vT}")
    a(f"v_add_u32 v{vDW[1]}, {8*1024 - 1024}, v{vDW[0]}")
    a(f"s_lshl_b32 s{sWoff}, s{sCol}, 7")
    a(f"s_lshl_b32 s{sTmp}, s{sWm}, 14")
    a(f"s_lshl_b32 s{sTmp2}, s{sKg}, 13")
    a(f"s_add_u32 s{sTmp}, s{sTmp}, s{sTmp2}")
    a(f"v_add_u32 v{vXa}, s{sTmp}, v{vL16}")
    a(f"v_bfe_u32 v{vT}, v{vLane}, 2, 2")
    a(f"v_lshlrev_b32 v{vT+1}, 7, v{vT}")
    a(f"v_lshrrev_b32 v{vT}, 1, v{vT}")
    a(f"v_xor_b32 v{vT}, s{sWn}, v{vT}")
    a(f"v_lshl_add_u32 v{vT+1}, v{vT}, 6, v{vT+1}")
    a(f"v_bfe_u32 v{vT}, v{vLane}, 4, 1")
    a(f"v_lshl_add_u32 v{vT+1}, v{vT}, 5, v{vT+1}")
    a(f"v_and_b32 v{vT}, 3, v{vLane}")
    a(f"v_lshl_add_u32 v{vT+1}, v{vT}, 3, v{vT+1}")
    a(f"v_lshrrev_b32 v{vT}, 5, v{vLane}")
    a(f"v_lshl_add_u32 v{vT+1}, v{vT}, 9, v{vT+1}")
    a(f"s_lshl_b32 s{sTmp}, s{sKg}, 14")
    a(f"s_add_u32 s{sTmp}, s{sTmp}, 2048")
    a(f"v_add_u32 v{vWa}, s{sTmp}, v{vT+1}")
    a(f"v_lshrrev_b32 v{vT}, 3, v0")
    a(f"v_lshlrev_b32 v{vT}, 10, v{vT}")
    a(f"v_and_b32 v{vT+1}, 7, v0")
    a(f"v_lshl_add_u32 v{vOo}, v{vT+1}, 4, v{vT}")
    a(f"s_lshl_b32 s{sOoff}, s{sRb}, 16")
    a(f"s_lshl_b32 s{sTmp}, s{sCol}, 7")
    a(f"s_add_u32 s{sOoff}, s{sOoff}, s{sTmp}")
    a("s_waitcnt lgkmcnt(0)")
    srd_off(a, sX, 4, 5, WS_H, 64 * 56 * 1024)
    a(f"s_sub_u32 s{sW}, s8, 2048")
    a(f"s_subb_u32 s{sW+1}, s9, 0")
    a(f"s_mov_b32 s{sW+2}, {896*1024 + 2048}")
    a(f"s_mov_b32 s{sW+3}, 0x20000")
    srd(a, sO, 10, 11, 2048 * 1024)
    srd_off(a, sP, 4, 5, WS_P, 8 * MB)
    srd(a, sXi, 6, 7, 2048 * 1024)
    def dma_issue(slot):
        r = [f"s_add_u32 m0, s{sW4k}, {slot*32768}", "s_nop 0"]
        r.append(f"buffer_load_dwordx4 v{vDX}, s[{sX}:{sX+3}], s{sXoff} offen lds")
        r.append(f"buffer_load_dwordx4 v{vDX}, s[{sX}:{sX+3}], s{sXoff} offen offset:1024 lds")
        r.append(f"buffer_load_dwordx4 v{vDW[0]}, s[{sW}:{sW+3}], s{sWoff} offen offset:2048 lds")
        r.append(f"buffer_load_dwordx4 v{vDW[1]}, s[{sW}:{sW+3}], s{sWoff} offen offset:3072 lds")
        r.append(f"s_add_u32 s{sXoff}, s{sXoff}, 8192")
        r.append(f"s_add_u32 s{sWoff}, s{sWoff}, {128*1024}")
        return r
    a.ext(dma_issue(0))
    a(f"s_lshl_b32 s{sTmp}, s{sKg}, 22")
    a(f"s_lshl_b32 s{sTmp2}, s{sRb}, 17")
    a(f"s_add_u32 s{sTmp}, s{sTmp}, s{sTmp2}")
    a(f"s_lshl_b32 s{sTmp2}, s{sWm}, 16")
    a(f"s_add_u32 s{sTmp}, s{sTmp}, s{sTmp2}")
    a(f"s_lshl_b32 s{sTmp2}, s{sCol}, 13")
    a(f"s_add_u32 s{sTmp}, s{sTmp}, s{sTmp2}")
    a(f"s_lshl_b32 s{sTmp2}, s{sWn}, 12")
    a(f"s_add_u32 s{sTmp}, s{sTmp}, s{sTmp2}")
    for q in range(4):
        a(f"buffer_load_dwordx4 {vr(vAcc+4*q,4)}, v{vL16}, s[{sP}:{sP+3}], s{sTmp} offen offset:{q*1024}")
    a(f"buffer_load_dwordx4 {vr(vX,4)}, v{vOo}, s[{sXi}:{sXi+3}], s{sOoff} offen")
    for s in range(1, 5): a.ext(dma_issue(s))
    later = {0: 16, 1: 12, 2: 12, 3: 12, 4: 8, 5: 4, 6: 0}
    for s in range(7):
        if s == 0: n = 16
        elif s == 1: n = 12
        elif s == 2: n = 12
        elif s == 3: n = 12
        elif s == 4: n = 8
        elif s == 5: n = 4
        else: n = 0
        a(f"s_waitcnt vmcnt({n})")
        a("s_barrier")
        if s in (1, 2): a.ext(dma_issue((s + 4) % 5))
        f = vF + 32 * (s & 1)
        for kk in range(4):
            a(f"ds_read_b128 {vr(f+4*kk,4)}, v{vXa} offset:{(kk>>1)*4096 + (kk&1)*1024}")
            a(f"ds_read_b64_tr_b16 {vr(f+16+4*kk,2)}, v{vWa} offset:{kk*4096}")
            a(f"ds_read_b64_tr_b16 {vr(f+16+4*kk+2,2)}, v{vWa} offset:{kk*4096+1024}")
        nxt = ((s + 1) % 5) * 32768 - (s % 5) * 32768
        if nxt > 0:
            a(f"v_add_u32 v{vXa}, {nxt}, v{vXa}"); a(f"v_add_u32 v{vWa}, {nxt}, v{vWa}")
        else:
            a(f"v_subrev_u32 v{vXa}, {-nxt}, v{vXa}"); a(f"v_subrev_u32 v{vWa}, {-nxt}, v{vWa}")
        for kk in range(4):
            a(f"s_waitcnt lgkmcnt({9-3*kk})")
            a(f"v_mfma_f32_32x32x16_bf16 {vr(vAcc,16)}, {vr(f+16+4*kk,4)}, {vr(f+4*kk,4)}, {vr(vAcc,16)}")
    base = 65536
    a(f"v_and_b32 v{vT}, 31, v{vLane}")
    a(f"s_lshl_b32 s{sTmp}, s{sWm}, 5")
    a(f"v_add_u32 v{vT}, s{sTmp}, v{vT}")
    a(f"v_mul_u32_u24 v{vT}, 272, v{vT}")
    a(f"v_lshrrev_b32 v{vT+1}, 5, v{vLane}")
    a(f"v_lshl_add_u32 v{vT}, v{vT+1}, 4, v{vT}")
    a(f"s_mul_i32 s{sTmp}, s{sKg}, 17408")
    a(f"s_lshl_b32 s{sTmp2}, s{sWn}, 7")
    a(f"s_add_u32 s{sTmp}, s{sTmp}, s{sTmp2}")
    a(f"s_add_u32 s{sTmp}, s{sTmp}, {base}")
    a(f"v_add_u32 v{vT}, s{sTmp}, v{vT}")
    a(f"v_lshrrev_b32 v{vT+1}, 3, v0")
    a(f"v_mul_u32_u24 v{vT+1}, 272, v{vT+1}")
    a(f"v_and_b32 v{vT+2}, 7, v0")
    a(f"v_lshl_add_u32 v{vT+1}, v{vT+2}, 5, v{vT+1}")
    a(f"v_add_u32 v{vT+1}, {base}, v{vT+1}")
    a("s_nop 3")
    for q in range(4):
        a(f"ds_write_b128 v{vT}, {vr(vAcc+4*q,4)} offset:{q*32}")
    a("s_waitcnt lgkmcnt(0)")
    a("s_barrier")
    a(f"ds_read_b128 {vr(vF,4)}, v{vT+1}")
    a(f"ds_read_b128 {vr(vF+4,4)}, v{vT+1} offset:16")
    a(f"ds_read_b128 {vr(vF+8,4)}, v{vT+1} offset:17408")
    a(f"ds_read_b128 {vr(vF+12,4)}, v{vT+1} offset:{17408+16}")
    a("s_waitcnt lgkmcnt(0)")
    for j in range(8):
        a(f"v_add_f32 v{vF+j}, v{vF+j}, v{vF+8+j}")
    for j in range(4):
        a(f"v_lshlrev_b32 v{vT+2}, 16, v{vX+j}")
        a(f"v_and_b32 v{vT+3}, 0xffff0000, v{vX+j}")
        a(f"v_add_f32 v{vT+2}, v{vT+2}, v{vF+2*j}")
        a(f"v_add_f32 v{vT+3}, v{vT+3}, v{vF+2*j+1}")
        a(f"v_cvt_pk_bf16_f32 v{vX+j}, v{vT+2}, v{vT+3}")
    a(f"buffer_store_dwordx4 {vr(vX,4)}, v{vOo}, s[{sO}:{sO+3}], s{sOoff} offen")
    a.label("L_k4_exit")
    a("s_endpgm")
    return nv
```

```python
MB = 1 << 20
WS_Q, WS_K, WS_V, WS_CTX = 0, 16*MB, 32*MB, 48*MB
WS_Z = 64*MB
WS_Z2N = 72*MB
WS_H = 76*MB
WS_P = 80*MB
WS_END = 88*MB
KA_X, KA_CKV, KA_WQ, KA_WUK, KA_WUV, KA_WO, KA_BX, KA_WIN, KA_WSP, KA_BSP, KA_WOUT, KA_OUT, KA_DBG, KA_WS = [8*i for i in range(14)]
```

```python
import sys
from asmlib import *
from layout import *
import k1
HDR = open("parallel_sum__compressed_kv_cla__mixer_gmlp__prompt.s.ref").read().split("; Override launch")[0]
def build(kernels):
    a = Asm()
    launches = []; descs = []
    body = Asm()
    for (name, fn, grid, block, lds) in kernels:
        nv = fn(body, name)
        if isinstance(nv, tuple): nv, acc = nv
        else: acc = None
        launches.append(f"; @launch kernel={name} grid=({grid},1,1) block=({block},1,1) lds={lds}")
        descs.append(kernel_desc(name, nv, 102, acc))
    txt = HDR + "\n".join(launches) + "\n" + '.amdgcn_target "amdgcn-amd-amdhsa--gfx950"\n.text\n' + body.text()
    import re
    txt = re.sub(r"(buffer_store_dwordx4[^\n]*)", lambda m: m.group(1) + " sc1", txt)
    txt += '.section .rodata,"a"\n' + "".join(descs)
    return txt
if __name__ == "__main__":
    ks = [("k1_kernel", k1.gen_k1, 256, 512, 163840)]
    try:
        import k2; ks.append(("k2_kernel", k2.gen_k2, 256, 512, k2.LDS))
        import k3; ks.append(("k3_kernel", k3.gen_k3, k3.GRID, k3.BLOCK, k3.LDS))
        import k4; ks.append(("k4_kernel", k4.gen_k4, k4.GRID, k4.BLOCK, k4.LDS))
    except ImportError as e:
        print("partial:", e)
    out = sys.argv[1] if len(sys.argv) > 1 else "parallel_sum__compressed_kv_cla__mixer_gmlp__prompt.s"
    open(out, "w").write(build(ks))
    print("wrote", out)
```

```python
import re, struct

def f32bits(x):
    return struct.unpack("<I", struct.pack("<f", x))[0]
def hexf(x):
    return "0x%08x" % f32bits(x)

def vr(b, n=1):
    return f"v{b}" if n == 1 else f"v[{b}:{b+n-1}]"
def ar(b, n=1):
    return f"a{b}" if n == 1 else f"a[{b}:{b+n-1}]"
def sr(b, n=1):
    return f"s{b}" if n == 1 else f"s[{b}:{b+n-1}]"

class Asm:
    def __init__(self):
        self.L = []
        self.uid = 0
    def __call__(self, s):
        for line in s.split("\n"):
            line = line.strip()
            if line:
                self.L.append(line)
    def ext(self, lst):
        for s in lst:
            self(s)
    def label(self, name):
        self.L.append(name + ":")
    def newlabel(self, base):
        self.uid += 1
        return f"L_{base}_{self.uid}"
    def text(self):
        out = []
        for l in self.L:
            if l.endswith(":") or l.startswith(".") or l.startswith(";"):
                out.append(l)
            else:
                out.append("    " + l)
        return "\n".join(out) + "\n"

class Alloc:
    def __init__(self, start=0, limit=256):
        self.p = start; self.limit = limit; self.names = {}
    def get(self, n=1, align=1, name=None):
        self.p = (self.p + align - 1) // align * align
        b = self.p; self.p += n
        assert self.p <= self.limit, f"out of regs: {self.p} > {self.limit}"
        if name: self.names[name] = b
        return b

def srd(a, d, base_lo, base_hi, nbytes):
    a(f"s_mov_b32 s{d}, s{base_lo}")
    a(f"s_mov_b32 s{d+1}, s{base_hi}")
    a(f"s_mov_b32 s{d+2}, {nbytes}")
    a(f"s_mov_b32 s{d+3}, 0x20000")

def srd_off(a, d, base_lo, base_hi, off, nbytes):
    a(f"s_add_u32 s{d}, s{base_lo}, {off}")
    a(f"s_addc_u32 s{d+1}, s{base_hi}, 0")
    a(f"s_mov_b32 s{d+2}, {nbytes}")
    a(f"s_mov_b32 s{d+3}, 0x20000")

def interleave(mfmas, fillers, per_gap=None):
    out = []
    n = len(mfmas); m = len(fillers); k = 0
    for i, grp in enumerate(mfmas):
        out += grp
        tgt = (i + 1) * m // n
        while k < tgt:
            out.append(fillers[k]); k += 1
    return out

def kernel_desc(name, vgpr, sgpr=102, accum=None):
    if accum is None:
        accum = (vgpr + 3) // 4 * 4
    return f""".p2align 6
.amdhsa_kernel {name}
  .amdhsa_next_free_vgpr {vgpr}
  .amdhsa_next_free_sgpr {sgpr}
  .amdhsa_accum_offset {accum}
  .amdhsa_group_segment_fixed_size 0
  .amdhsa_kernarg_size 112
  .amdhsa_user_sgpr_count 2
  .amdhsa_user_sgpr_kernarg_segment_ptr 1
  .amdhsa_system_sgpr_workgroup_id_x 1
.end_amdhsa_kernel
"""

import os
STAMP = os.environ.get("STAMP", "")
WS_STAMP = 96 << 20
class Stamper:
    def __init__(self, a, kname, base=60):
        self.a = a; self.on = (kname in STAMP.split(",")); self.base = base
    def stamp(self, idx):
        if not self.on: return
        assert idx < 16
        self.a("s_memtime s[92:93]")
        self.a("s_memrealtime s[94:95]")
        self.a("s_waitcnt lgkmcnt(0)")
        self.a(f"s_mov_b32 s{self.base+2*idx}, s92")
        self.a(f"s_mov_b32 s{self.base+2*idx+1}, s94")
    def copy(self, dst, src):
        if not self.on: return
        self.a(f"s_mov_b64 s[{self.base+2*dst}:{self.base+2*dst+1}], s[{self.base+2*src}:{self.base+2*src+1}]")
    def real(self, idx): pass
    def dump(self, ws_lo, swave, nst=16):
        if not self.on: return
        a = self.a
        a(f"s_add_u32 s96, s{ws_lo}, {WS_STAMP}")
        a(f"s_addc_u32 s97, s{ws_lo+1}, 0")
        a(f"s_mov_b32 s98, 0x100000")
        a(f"s_mov_b32 s99, 0x20000")
        a(f"s_lshl_b32 s100, s2, 3")
        a(f"s_add_u32 s100, s100, s{swave}")
        a(f"s_lshl_b32 s100, s100, 7")
        a(f"v_mov_b32 v1, 0")
        for i in range(32):
            a(f"v_mov_b32 v2, s{self.base+i}")
            a(f"buffer_store_dword v2, v1, s[96:99], s100 offen offset:{4*i}")
```

```python
import math, os
from asmlib import *
from layout import *

LOG2E = 1.4426950408889634
QSCALE = (128 ** -0.5) * LOG2E
GC1 = -2.0 * math.sqrt(2.0 / math.pi) * LOG2E
GC2 = GC1 * 0.044715
OOB = 0x80000000

def gen_k1(a, name="k1_kernel"):
    D = 5; R = 8
    va = Alloc(1)
    vA = va.get(128, 4)
    vACC = [va.get(16, 4), va.get(16, 4)]
    vF = va.get(4 * R, 4)
    vPK = va.get(8, 4)
    vDMA = va.get(4)
    vRD = [va.get(), va.get()]
    vRB = va.get()
    vST = va.get()
    vT = va.get(16)
    vLane = va.get()
    vPF = va.get(); vPA = va.get(); vPB = va.get(2)
    nv = va.p
    sA, sW, sO = 20, 24, 28
    sWave, sRB, sG, sStart, sN, sT, sDoff, sM0, sOoff, sTb, sC1, sC2, sTmp, sTmp2, sCt, sLd, sAm0, sAoff, sPf = range(32, 51)

    a(f".globl {name}\n.p2align 8\n.type {name},@function")
    a.label(name)
    a(f"s_cmp_ge_u32 s2, 256")
    a(f"s_cbranch_scc1 L_k1_exit")
    st = Stamper(a, "k1")
    st.stamp(0); st.real(1)
    a(f"s_load_dwordx4 s[4:7], s[0:1], {KA_X}")
    a(f"s_load_dwordx4 s[8:11], s[0:1], {KA_WQ}")
    a(f"s_load_dwordx2 s[12:13], s[0:1], {KA_WUV}")
    a(f"s_load_dwordx2 s[14:15], s[0:1], {KA_WIN}")
    a(f"s_load_dwordx2 s[16:17], s[0:1], {KA_WS}")
    a(f"s_load_dwordx2 s[52:53], s[0:1], {KA_WSP}")
    a(f"s_load_dwordx2 s[54:55], s[0:1], {KA_WO}")
    a(f"s_load_dwordx2 s[56:57], s[0:1], {KA_WOUT}")
    a(f"v_lshrrev_b32 v{vT}, 6, v0")
    a(f"v_and_b32 v{vLane}, 63, v0")
    a(f"v_readfirstlane_b32 s{sWave}, v{vT}")
    a(f"s_bfe_u32 s{sG}, s2, 0x20001")
    a(f"s_lshl_b32 s{sG}, s{sG}, 3")
    a(f"s_bfe_u32 s{sTmp}, s2, 0x30003")
    a(f"s_add_u32 s{sG}, s{sG}, s{sTmp}")
    a(f"s_and_b32 s{sRB}, s2, 1")
    a(f"s_lshl_b32 s{sRB}, s{sRB}, 2")
    a(f"s_lshr_b32 s{sTmp}, s2, 6")
    a(f"s_add_u32 s{sRB}, s{sRB}, s{sTmp}")
    a(f"s_lshl_b32 s{sTb}, s{sRB}, 3")
    a(f"s_add_u32 s{sTb}, s{sTb}, s{sWave}")
    a(f"v_lshrrev_b32 v{vT}, 5, v{vLane}")
    a(f"v_lshlrev_b32 v{vRB}, 9, v{vT}")
    a(f"v_bfe_u32 v{vT}, v{vLane}, 2, 2")
    a(f"v_lshl_add_u32 v{vRB}, v{vT}, 6, v{vRB}")
    a(f"v_bfe_u32 v{vT}, v{vLane}, 4, 1")
    a(f"v_lshl_add_u32 v{vRB}, v{vT}, 5, v{vRB}")
    a(f"v_and_b32 v{vT}, 3, v{vLane}")
    a(f"v_lshl_add_u32 v{vRB}, v{vT}, 3, v{vRB}")
    a(f"v_lshlrev_b32 v{vST}, 4, v{vLane}")
    a(f"s_mov_b32 s{sC1}, {hexf(GC1)}")
    a(f"s_mov_b32 s{sC2}, {hexf(GC2)}")
    a("s_waitcnt lgkmcnt(0)")
    st.stamp(1)
    a(f"s_cmp_lt_u32 s{sG}, 9")
    a("s_cbranch_scc1 L_k1_K")
    a(f"s_cmp_lt_u32 s{sG}, 18")
    a("s_cbranch_scc1 L_k1_V")
    a(f"s_cmp_lt_u32 s{sG}, 27")
    a("s_cbranch_scc1 L_k1_Q")
    a("s_branch L_k1_Z")

    for kind in "KVQZ":
        a.label(f"L_k1_{kind}")
        rs = 3584 if kind == "Z" else 8192
        wbytes = 512 * rs
        if kind in "KVQ":
            if kind == "V": a(f"s_sub_u32 s{sG}, s{sG}, 9")
            if kind == "Q": a(f"s_sub_u32 s{sG}, s{sG}, 18")
            a(f"s_mul_i32 s{sStart}, s{sG}, 14")
            a(f"s_min_u32 s{sTmp}, s{sG}, 2")
            a(f"s_add_u32 s{sStart}, s{sStart}, s{sTmp}")
            a(f"s_cmp_lt_u32 s{sG}, 2")
            a(f"s_cselect_b32 s{sN}, 15, 14")
        else:
            a(f"s_sub_u32 s{sG}, s{sG}, 27")
            a(f"s_mul_i32 s{sStart}, s{sG}, 11")
            a(f"s_min_u32 s{sTmp}, s{sG}, 1")
            a(f"s_add_u32 s{sStart}, s{sStart}, s{sTmp}")
            a(f"s_cmp_lt_u32 s{sG}, 1")
            a(f"s_cselect_b32 s{sN}, 12, 11")
        ap = 4 if kind in "QZ" else 6
        wp = {"Q": 8, "K": 10, "V": 12, "Z": 14}[kind]
        srd(a, sA, ap, ap + 1, 2048 * 1024)
        srd(a, sW, wp, wp + 1, wbytes)
        ooff = {"Q": WS_Q, "K": WS_K, "V": WS_V, "Z": WS_Z}[kind]
        osz = 64 * 56 * 2048 if kind == "Z" else 16 * MB
        srd_off(a, sO, 16, 17, ooff, osz)
        a(f"v_lshrrev_b32 v{vT}, 2, v{vLane}")
        a(f"s_lshl_b32 s{sTmp}, s{sWave}, 6")
        a(f"v_add_u32 v{vT}, s{sTmp}, v{vT}")
        a(f"s_mov_b32 s{sTmp}, {rs}")
        a(f"v_mul_lo_u32 v{vT}, v{vT}, s{sTmp}")
        a(f"v_and_b32 v{vT+1}, 3, v{vLane}")
        a(f"v_lshl_add_u32 v{vDMA}, v{vT+1}, 4, v{vT}")
        for i in range(1, 4):
            a(f"v_add_u32 v{vDMA+i}, {16*rs - 1024}, v{vDMA+i-1}")
        vAD = vF; vAR = vF + 4
        for i in range(2):
            a(f"v_lshrrev_b32 v{vT}, 4, v{vLane}")
            if i: a(f"v_add_u32 v{vT}, 4, v{vT}")
            a(f"v_and_b32 v{vT+1}, 7, v{vLane}")
            a(f"v_xor_b32 v{vT}, v{vT}, v{vT+1}")
            a(f"v_lshrrev_b32 v{vT+1}, 3, v{vLane}")
            a(f"v_lshlrev_b32 v{vT+1}, 10, v{vT+1}")
            a(f"v_lshl_add_u32 v{vAD+i}, v{vT}, 4, v{vT+1}")
        a(f"v_add_u32 v{vAD+1}, {7*1024}, v{vAD+1}")
        a(f"v_add_u32 v{vAD+2}, {14*1024}, v{vAD}")
        a(f"v_add_u32 v{vAD+3}, {14*1024}, v{vAD+1}")
        a(f"s_mul_i32 s{sAm0}, s{sWave}, 12288")
        a(f"s_add_u32 s{sAm0}, s{sAm0}, 65536")
        a(f"s_lshl_b32 s{sAoff}, s{sTb}, 15")
        def a_dma(j):
            r = [f"s_add_u32 m0, s{sAm0}, {(j%3)*4096}", f"s_add_u32 s{sTmp2}, s{sAoff}, {j*128}"]
            for i in range(4):
                r.append(f"buffer_load_dwordx4 v{vAD+i}, s[{sA}:{sA+3}], s{sTmp2} offen offset:{i*1024} lds")
            return r

        def dma_issue(first=False):
            r = []
            r.append(f"s_add_u32 s{sTmp}, s{sStart}, s{sLd}")
            r.append(f"s_lshl_b32 s{sDoff}, s{sTmp}, 6")
            r.append(f"s_cmp_lt_u32 s{sLd}, s{sN}")
            r.append(f"s_cselect_b32 s{sDoff}, s{sDoff}, {OOB}")
            r.append(f"s_and_b32 s{sTmp}, s{sLd}, 3")
            r.append(f"s_lshl_b32 s{sTmp}, s{sTmp}, 15")
            r.append(f"s_lshl_b32 s{sM0}, s{sWave}, 12")
            r.append(f"s_add_u32 m0, s{sM0}, s{sTmp}")
            r.append(f"s_add_u32 s{sLd}, s{sLd}, 1")
            for i in range(4):
                r.append(f"buffer_load_dwordx4 v{vDMA+i}, s[{sW}:{sW+3}], s{sDoff} offen offset:{i*1024} lds")
            return r
        a(f"s_mov_b32 s{sLd}, 0")
        for j in range(3): a.ext(a_dma(j))
        a.ext(dma_issue())
        a.ext(dma_issue())
        a(f"v_and_b32 v{vT}, 31, v{vLane}")
        a(f"v_bfe_u32 v{vT+1}, v{vT}, 1, 3")
        a(f"v_lshrrev_b32 v{vT+2}, 5, v{vLane}")
        a(f"v_xor_b32 v{vT+1}, v{vT+1}, v{vT+2}")
        a(f"v_lshlrev_b32 v{vT}, 7, v{vT}")
        a(f"v_add_u32 v{vT}, s{sAm0}, v{vT}")
        for ksl in range(4):
            a(f"v_xor_b32 v{vT+2}, {2*ksl}, v{vT+1}")
            a(f"v_lshl_add_u32 v{vAR+ksl}, v{vT+2}, 4, v{vT}")
        s1 = [vT+2, vT+3]; s2 = [vT+4, vT+5]; one = vT + 6
        if kind in "QZ":
            a(f"v_mov_b32 v{one}, 0x3f803f80")
            for x in s1 + s2: a(f"v_mov_b32 v{x}, 0")
        a(f"v_lshrrev_b32 v{vPA}, 3, v{vLane}")
        a(f"s_lshl_b32 s{sTmp}, s{sTb}, 3")
        a(f"v_add_u32 v{vPA}, s{sTmp}, v{vPA}")
        a(f"v_mul_u32_u24 v{vPA}, {rs}, v{vPA}")
        a(f"v_and_b32 v{vT}, 3, v{vLane}")
        a(f"v_lshl_add_u32 v{vPA}, v{vT}, 7, v{vPA}")
        a(f"s_lshl_b32 s{sPf}, s{sStart}, 6")
        a(f"s_and_b32 s{sPf}, s{sPf}, 0xffffff80")
        for j in range(8):
            if j < 3: n = 4 * (2 - j) + 8 + 4 * j
            else: n = 4 * (min(j + 2, 7) - j) + (1 if j > 4 else 0)
            if j == 0: st.stamp(7)
            a(f"s_waitcnt vmcnt({n})")
            if j in (0, 3): st.stamp(8 + j // 3)
            for ksl in range(4):
                a(f"ds_read_b128 {vr(vA+16*j+4*ksl,4)}, v{vAR+ksl} offset:{(j%3)*4096}")
            a("s_waitcnt lgkmcnt(0)")
            if j + 3 < 8: a.ext(a_dma(j + 3))
            if j == 4: a(f"buffer_load_dword v{vPF}, v{vPA}, s[{sW}:{sW+3}], s{sPf} offen")
            if kind in "QZ":
                for r in range(vA + 16*j, vA + 16*j + 16):
                    a(f"v_dot2_f32_bf16 v{s1[r&1]}, v{r}, v{one}, v{s1[r&1]}")
                    a(f"v_dot2_f32_bf16 v{s2[r&1]}, v{r}, v{r}, v{s2[r&1]}")
        st.stamp(2)
        a("s_barrier")
        st.stamp(10)
        a.ext(dma_issue())
        a(f"s_mov_b32 s{sOoff}, {OOB}")
        for i in range(2):
            a(f"buffer_store_dword v{vST}, v{vST}, s[{sO}:{sO+3}], s{sOoff} offen")
        if kind in "QZ":
            a("s_nop 2")
            a(f"v_add_f32 v{s1[0]}, v{s1[0]}, v{s1[1]}")
            a(f"v_add_f32 v{s2[0]}, v{s2[0]}, v{s2[1]}")
            a(f"v_mov_b32 v{s1[1]}, v{s1[0]}")
            a(f"v_mov_b32 v{s2[1]}, v{s2[0]}")
            a("s_nop 1")
            a(f"v_permlane32_swap_b32 v{s1[0]}, v{s1[1]}")
            a(f"v_permlane32_swap_b32 v{s2[0]}, v{s2[1]}")
            a("s_nop 1")
            a(f"v_add_f32 v{s1[0]}, v{s1[0]}, v{s1[1]}")
            a(f"v_add_f32 v{s2[0]}, v{s2[0]}, v{s2[1]}")
            mean, var, rr, nb = vT+7, vT+8, vT+9, vT+10
            a(f"v_mul_f32 v{mean}, {hexf(1/512)}, v{s1[0]}")
            a(f"v_mul_f32 v{var}, {hexf(1/512)}, v{s2[0]}")
            a(f"v_fma_f32 v{var}, -v{mean}, v{mean}, v{var}")
            a(f"v_max_f32 v{var}, 0, v{var}")
            a(f"v_add_f32 v{var}, {hexf(1e-5)}, v{var}")
            a(f"v_rsq_f32 v{rr}, v{var}")
            a("s_nop 0")
            if kind == "Q":
                a(f"v_mul_f32 v{rr}, {hexf(QSCALE)}, v{rr}")
            a(f"v_mul_f32 v{nb}, v{mean}, v{rr}")
            a(f"v_sub_f32 v{nb}, 0, v{nb}")
            for r in range(0, 128, 2):
                t = [vT+11, vT+12, vT+13, vT+14]
                a(f"v_lshlrev_b32 v{t[0]}, 16, v{vA+r}")
                a(f"v_and_b32 v{t[1]}, 0xffff0000, v{vA+r}")
                a(f"v_lshlrev_b32 v{t[2]}, 16, v{vA+r+1}")
                a(f"v_and_b32 v{t[3]}, 0xffff0000, v{vA+r+1}")
                for x in t: a(f"v_fma_f32 v{x}, v{x}, v{rr}, v{nb}")
                a(f"v_cvt_pk_bf16_f32 v{vA+r}, v{t[0]}, v{t[1]}")
                a(f"v_cvt_pk_bf16_f32 v{vA+r+1}, v{t[2]}, v{t[3]}")
        st.stamp(3)
        st.stamp(4)
        if os.environ.get("PF") == "k1loop":
            srd(a, 4, 52, 53, 2048 * 4096)
            srd(a, 8, 54, 55, 4096 * 1024)
            srd(a, 12, 56, 57, 896 * 1024)
            a(f"s_lshl_b32 s52, s2, 3")
            a(f"s_add_u32 s52, s52, s{sWave}")
            a(f"s_lshl_b32 s53, s52, 11")
            a(f"s_lshl_b32 s54, s52, 9")
            a(f"s_lshl_b32 s52, s52, 12")
            a(f"v_lshlrev_b32 v{vPB}, 7, v{vLane}")
            a(f"v_and_b32 v{vPB}, 0x7ff, v{vPB}")
            a(f"v_and_b32 v{vPB+1}, 0x1ff, v{vPB}")
        a(f"v_mov_b32 v{vRD[0]}, v{vRB}")
        a(f"v_add_u32 v{vRD[1]}, 32768, v{vRB}")

        def reads(step, p):
            q = p if step < 32 else 1 - p
            ks = step % 32
            f = vF + 4 * (step % R)
            return [f"ds_read_b64_tr_b16 {vr(f,2)}, v{vRD[q]} offset:{ks*1024}",
                    f"ds_read_b64_tr_b16 {vr(f+2,2)}, v{vRD[q]} offset:{ks*1024+256}"]
        for s in range(D):
            a.ext(reads(s, 0))
        a(f"s_mov_b32 s{sT}, 0")
        a(f"s_mov_b32 s{sOoff}, {OOB}")

        def epi(acc):
            r = []
            if kind == "Z":
                for h in range(0, 16, 4):
                    t = [vT + i for i in range(4)]
                    x = [acc + h + i for i in range(4)]
                    for i in range(4): r.append(f"v_mul_f32 v{t[i]}, v{x[i]}, v{x[i]}")
                    for i in range(4): r.append(f"v_fma_f32 v{t[i]}, v{t[i]}, s{sC2}, v{vT+15}")
                    for i in range(4): r.append(f"v_mul_f32 v{t[i]}, v{t[i]}, v{x[i]}")
                    for i in range(4): r.append(f"v_exp_f32 v{t[i]}, v{t[i]}")
                    for i in range(4): r.append(f"v_add_f32 v{t[i]}, 1.0, v{t[i]}")
                    for i in range(4): r.append(f"v_rcp_f32 v{t[i]}, v{t[i]}")
                    r.append(f"v_mul_f32 v{t[0]}, v{t[0]}, v{x[0]}")
                    r.append(f"v_mul_f32 v{t[1]}, v{t[1]}, v{x[1]}")
                    r.append(f"v_mul_f32 v{t[2]}, v{t[2]}, v{x[2]}")
                    r.append(f"v_mul_f32 v{t[3]}, v{t[3]}, v{x[3]}")
                    r.append(f"v_cvt_pk_bf16_f32 v{vPK+h//2}, v{t[0]}, v{t[1]}")
                    r.append(f"v_cvt_pk_bf16_f32 v{vPK+h//2+1}, v{t[2]}, v{t[3]}")
                    if h == 4:
                        r.append(f"buffer_store_dwordx4 {vr(vPK,4)}, v{vST}, s[{sO}:{sO+3}], s{sOoff} offen")
            else:
                for i in range(4):
                    r.append(f"v_cvt_pk_bf16_f32 v{vPK+i}, v{acc+2*i}, v{acc+2*i+1}")
                r.append(f"buffer_store_dwordx4 {vr(vPK,4)}, v{vST}, s[{sO}:{sO+3}], s{sOoff} offen")
                for i in range(4, 8):
                    r.append(f"v_cvt_pk_bf16_f32 v{vPK+i}, v{acc+2*i}, v{acc+2*i+1}")
            r.append(f"buffer_store_dwordx4 {vr(vPK+4,4)}, v{vST}, s[{sO}:{sO+3}], s{sOoff} offen offset:1024")
            return r
        def calc_ooff():
            r = [f"s_add_u32 s{sCt}, s{sStart}, s{sT}"]
            if kind == "Z":
                r.append(f"s_mul_i32 s{sOoff}, s{sTb}, {56*2048}")
                r.append(f"s_lshl_b32 s{sCt}, s{sCt}, 11")
                r.append(f"s_add_u32 s{sOoff}, s{sOoff}, s{sCt}")
            else:
                r.append(f"s_lshr_b32 s{sOoff}, s{sCt}, 2")
                r.append(f"s_lshl_b32 s{sOoff}, s{sOoff}, 19")
                r.append(f"s_and_b32 s{sCt}, s{sCt}, 3")
                r.append(f"s_lshl_b32 s{sCt}, s{sCt}, 11")
                r.append(f"s_add_u32 s{sOoff}, s{sOoff}, s{sCt}")
                r.append(f"s_lshl_b32 s{sCt}, s{sTb}, 13")
                r.append(f"s_add_u32 s{sOoff}, s{sOoff}, s{sCt}")
            return r
        if kind == "Z":
            a(f"v_mov_b32 v{vT+15}, s{sC1}")
        loop = f"L_k1_{kind}_loop"
        a.label(loop)
        for p in range(2):
            a("s_waitcnt vmcnt(8)")
            a("s_barrier")
            groups = []
            for ks in range(32):
                f = vF + 4 * (ks % R)
                c = "0" if ks == 0 else vr(vACC[p], 16)
                if kind == "V":
                    m = f"v_mfma_f32_32x32x16_bf16 {vr(vACC[p],16)}, {vr(vA+4*ks,4)}, {vr(f,4)}, {c}"
                else:
                    m = f"v_mfma_f32_32x32x16_bf16 {vr(vACC[p],16)}, {vr(f,4)}, {vr(vA+4*ks,4)}, {c}"
                g = [f"s_waitcnt lgkmcnt({2*(D-1)})", m] + reads(ks + D, p)
                if ks == 32 - D - 1:
                    g.append(f"v_xor_b32 v{vRD[p]}, 0x10000, v{vRD[p]}")
                groups.append(g)
            dma = dma_issue()
            ep = epi(vACC[1 - p])
            if p == 0:
                lab = a.newlabel("k1pf")
                ep = ep + [f"s_cmp_lg_u32 s{sT}, 2\ns_cbranch_scc1 {lab}\nbuffer_load_dword v{vPF}, v{vPA}, s[{sW}:{sW+3}], s{sPf} offen offset:512\n{lab}:"]
            elif os.environ.get("PF") == "k1loop":
                for tt, ins in ((3, f"buffer_load_dword v{vPF}, v{vPB}, s[4:7], s52 offen"), (5, f"buffer_load_dword v{vPF}, v{vPB}, s[4:7], s52 offen offset:2048"),
                                (7, f"buffer_load_dword v{vPF}, v{vPB}, s[8:11], s53 offen"), (9, f"buffer_load_dword v{vPF}, v{vPB+1}, s[12:15], s54 offen")):
                    lab = a.newlabel("k1pf")
                    ep = ep + [f"s_cmp_lg_u32 s{sT}, {tt}\ns_cbranch_scc1 {lab}\n{ins}\n{lab}:"]
            out = []
            fill_a = dma
            fill_b = ep
            post = calc_ooff()
            nb_gaps = 26
            k = 0
            for ks, g in enumerate(groups):
                out += g
                if ks == 0: out += fill_a[:10]
                elif ks < 4: out += [fill_a[9 + ks]]
                elif ks < 4 + nb_gaps:
                    tgt = (ks - 3) * len(fill_b) // nb_gaps
                    while k < tgt:
                        out.append(fill_b[k]); k += 1
                elif ks == 30:
                    out += post
            if os.environ.get("K1_NODMA"): out = [x for x in out if not x.endswith("lds")]
            if os.environ.get("K1_NOSTORE"): out = [x for x in out if not x.startswith("buffer_store")]
            if os.environ.get("K1_HALFRD"): out = [x for x in out if not (x.startswith("ds_read") and (int(x.split("offset:")[1]) >> 10) & 1)]
            a.ext(out)
            a(f"s_add_u32 s{sT}, s{sT}, 1")
            a(f"s_cmp_ge_u32 s{sT}, s{sN}")
            a(f"s_cbranch_scc1 L_k1_{kind}_fin{p}")
        a(f"s_branch {loop}")
        for p in range(2):
            a.label(f"L_k1_{kind}_fin{p}")
            pf = kind in "KV" and os.environ.get("PF", "k1") == "k1"
            if pf:
                a(f"s_load_dwordx2 s[4:5], s[0:1], {KA_WSP}")
                a(f"s_load_dwordx2 s[6:7], s[0:1], {KA_WO}")
                a(f"s_load_dwordx2 s[8:9], s[0:1], {KA_WOUT}")
            a("s_nop 15")
            st.stamp(5)
            a.ext(epi(vACC[p]))
            if pf:
                a(f"s_lshl_b32 s{sTmp}, s{sG}, 6")
                if kind == "V": a(f"s_add_u32 s{sTmp}, s{sTmp}, {9*64}")
                a(f"s_add_u32 s{sTmp}, s{sTmp}, s{sTb}")
                a(f"s_lshl_b32 s{sTmp2}, s{sTmp}, 12")
                a(f"s_lshl_b32 s{sTmp}, s{sTmp}, 13")
                a(f"v_lshlrev_b32 v{vT}, 7, v{vLane}")
                a(f"v_and_b32 v{vT+1}, 0xfff, v{vT}")
                a("s_waitcnt lgkmcnt(0)")
                srd(a, sA, 4, 5, 2048 * 4096)
                srd(a, sW, 6, 7, 4096 * 1024)
                srd(a, 12, 8, 9, 896 * 1024)
                a(f"buffer_load_dword v{vPF}, v{vT}, s[{sA}:{sA+3}], s{sTmp} offen")
                a(f"buffer_load_dword v{vPF}, v{vT+1}, s[{sW}:{sW+3}], s{sTmp2} offen")
                a(f"buffer_load_dword v{vPF}, v{vT}, s[12:15], s{sTmp} offen")
            if st.on: a("s_waitcnt vmcnt(0)")
            st.stamp(6); st.real(7)
            st.dump(16, sWave)
            a("s_endpgm")
    a.label("L_k1_exit")
    a("s_endpgm")
    return nv
```

```python
import os
from asmlib import *
from layout import *
LDS = 131072
OOB = 0x80000000
TH = float(2.0 ** 30)
NEG = -1e30

def gen_k2(a, name="k2_kernel"):
    D = 10; R = 16
    va = Alloc(1)
    vQ = va.get(32, 4); vO = va.get(64, 4)
    vS = [va.get(16, 4), va.get(16, 4)]
    vC = va.get(16, 4)
    vP = [va.get(8, 4), va.get(8, 4)]
    vF = va.get(4 * R, 4)
    vE = va.get(8, 4)
    vTS = va.get(); vL = va.get()
    vRd = va.get(); vRn = va.get()
    vL16 = va.get(); vDq = va.get(); vNeg = va.get(); vLane = va.get()
    vT = va.get(8, 2)
    nv = va.p
    sKV, sQ, sCx, sZ, sZN = 8, 12, 16, 20, 24
    (sWave, sH, sQb, sRem, sU, sNP, sDoff, sDo, sSlot, sW4k, sTmp, sTmp2, sQoff, sQoff2, sBlk, sQg, sCoff, sLeft, sTb,
     sZo, sZs, sDo2, sCnt) = range(28, 51)
    sMk = 52

    a(f".globl {name}\n.p2align 8\n.type {name},@function")
    a.label(name)
    a("s_cmp_ge_u32 s2, 256")
    a("s_cbranch_scc1 L_k2_exit")
    st = Stamper(a, "k2")
    st.stamp(0)
    a(f"s_load_dwordx2 s[4:5], s[0:1], {KA_WS}")
    a(f"s_load_dwordx2 s[6:7], s[0:1], {KA_WO}")
    a(f"s_load_dwordx2 s[58:59], s[0:1], {KA_WSP}")
    a(f"s_load_dwordx2 s[100:101], s[0:1], {KA_WOUT}")
    a(f"v_lshrrev_b32 v{vT}, 6, v0")
    a(f"v_and_b32 v{vLane}, 63, v0")
    a(f"v_readfirstlane_b32 s{sWave}, v{vT}")
    a(f"v_lshlrev_b32 v{vL16}, 4, v{vLane}")
    a(f"s_and_b32 s{sTmp}, s2, 7")
    a(f"s_lshl_b32 s{sTmp}, s{sTmp}, 2")
    a(f"s_bfe_u32 s{sTmp2}, s2, 0x20003")
    a(f"s_add_u32 s{sH}, s{sTmp}, s{sTmp2}")
    a(f"s_lshr_b32 s{sTmp}, s2, 5")
    a(f"s_sub_u32 s{sTmp2}, 15, s{sTmp}")
    a(f"s_lshl_b32 s{sNP}, s{sTmp2}, 1")
    a(f"s_add_u32 s{sNP}, s{sNP}, 2")
    a(f"s_and_b32 s{sQg}, s{sWave}, 3")
    a(f"s_lshr_b32 s{sBlk}, s{sWave}, 2")
    a(f"s_cmp_eq_u32 s{sBlk}, 0")
    a(f"s_cselect_b32 s{sQb}, s{sTmp2}, s{sTmp}")
    a(f"s_lshl_b32 s{sTb}, s{sQb}, 2")
    a(f"s_add_u32 s{sTb}, s{sTb}, s{sQg}")
    a(f"s_lshl_b32 s{sQoff}, s{sH}, 19")
    a(f"s_lshl_b32 s{sSlot}, s{sQg}, 12")
    a(f"s_add_u32 s{sDoff}, s{sQoff}, s{sSlot}")
    a(f"s_mov_b32 s{sU}, 0")
    a(f"s_lshl_b32 s{sTmp}, s{sTb}, 13")
    a(f"s_add_u32 s{sQoff}, s{sQoff}, s{sTmp}")
    a(f"s_add_u32 s{sQoff2}, s{sQoff}, 4096")
    a(f"s_mov_b32 s{sKV+2}, {32*MB}")
    a(f"s_mov_b32 s{sKV+3}, 0x20000")
    a(f"s_mov_b32 s{sQ+2}, {16*MB}")
    a(f"s_mov_b32 s{sQ+3}, 0x20000")
    a("s_waitcnt lgkmcnt(0)")
    a(f"s_add_u32 s{sKV}, s4, {WS_K}")
    a(f"s_addc_u32 s{sKV+1}, s5, 0")
    a(f"s_mov_b32 s{sQ}, s4")
    a(f"s_mov_b32 s{sQ+1}, s5")
    assert WS_Q == 0

    def dma_issue():
        r = []
        r.append(f"s_cmp_lt_u32 s{sU}, s{sNP}\ns_cselect_b32 s{sDo}, s{sDoff}, {OOB}\ns_mov_b32 m0, s{sSlot}\ns_sub_u32 s{sTmp}, s{sU}, 1")
        for i in range(4):
            r.append(f"buffer_load_dwordx4 v{vL16}, s[{sKV}:{sKV+3}], s{sDo} offen offset:{i*1024} lds")
        r.append(f"s_add_u32 s{sDo2}, s{sDoff}, {16*MB - 16384}\ns_cmp_lt_u32 s{sTmp}, s{sNP}\ns_cselect_b32 s{sDo2}, s{sDo2}, {OOB}\ns_add_u32 m0, s{sSlot}, 16384\ns_add_u32 s{sSlot}, s{sSlot}, 32768")
        for i in range(4):
            r.append(f"buffer_load_dwordx4 v{vL16}, s[{sKV}:{sKV+3}], s{sDo2} offen offset:{i*1024} lds")
        r.append(f"s_and_b32 s{sSlot}, s{sSlot}, 0x1ffff\ns_add_u32 s{sU}, s{sU}, 1\ns_add_u32 s{sDoff}, s{sDoff}, 16384\ns_sub_u32 s{sLeft}, s{sLeft}, 1")
        return r
    a(f"s_add_u32 s{sLeft}, s{sNP}, 4")
    a(f"s_cmp_eq_u32 s{sBlk}, 0")
    a("s_cbranch_scc1 L_k2_nodma0")
    a.ext(dma_issue())
    a.label("L_k2_nodma0")
    for ks in range(8):
        so = sQoff if ks < 4 else sQoff2
        a(f"buffer_load_dwordx4 {vr(vQ+4*ks,4)}, v{vL16}, s[{sQ}:{sQ+3}], s{so} offen offset:{(ks&3)*1024}")
    st.stamp(1)
    srd_off(a, sCx, 4, 5, WS_CTX, 16 * MB)
    srd_off(a, sZ, 4, 5, WS_Z, 64 * 56 * 2048)
    srd_off(a, sZN, 4, 5, WS_Z2N, 2048 * 1792)
    a(f"s_mov_b32 s{sRem}, s{sTb}")
    a(f"v_mov_b32 v{vRd}, v{vL16}")
    a(f"v_add_u32 v{vRn}, 32768, v{vL16}")
    a(f"v_and_b32 v{vDq}, 31, v{vLane}")
    a(f"v_lshrrev_b32 v{vT}, 5, v{vLane}")
    a(f"v_lshlrev_b32 v{vT}, 2, v{vT}")
    a(f"v_sub_u32 v{vDq}, v{vDq}, v{vT}")
    a(f"v_mov_b32 v{vNeg}, {hexf(NEG)}")
    for i in range(64): a(f"v_mov_b32 v{vO+i}, 0")
    for i in range(16): a(f"v_mov_b32 v{vC+i}, 0")
    for i in range(8): a(f"v_mov_b32 v{vP[1]+i}, 0")
    a(f"v_mov_b32 v{vL}, 0")

    rare = []
    def frag_read(idx, m, p, base):
        off = p * 8192 + (m * 1024 if m < 8 else 16384 + (m - 8) * 1024)
        f = vF + 4 * (idx % R)
        return f"ds_read_b128 {vr(f,4)}, v{base} offset:{off}"
    def mfma(m, idx, p):
        f = vF + 4 * (idx % R)
        if m < 8:
            c = vr(vC, 16) if m == 0 else vr(vS[p], 16)
            return f"v_mfma_f32_32x32x16_bf16 {vr(vS[p],16)}, {vr(f,4)}, {vr(vQ+4*m,4)}, {c}"
        dt, k2 = (m - 8) >> 1, (m - 8) & 1
        return f"v_mfma_f32_32x32x16_bf16 {vr(vO+16*dt,16)}, {vr(f,4)}, {vr(vP[p]+4*k2,4)}, {vr(vO+16*dt,16)}"
    def sm(sb):
        S = vS[sb]; P = vP[sb]; r = []
        def post(k):
            e0, e1 = vE + (2*k) % 8, vE + (2*k+1) % 8
            x = []
            if k == 0:
                x.append(f"v_add_f32 v{vTS}, v{e0}, v{e1}")
            else:
                x.append(f"v_add_f32 v{vTS}, v{vTS}, v{e0}")
                x.append(f"v_add_f32 v{vTS}, v{vTS}, v{e1}")
            x.insert(1, f"v_cvt_pk_bf16_f32 v{P+k}, v{e0}, v{e1}")
            return x
        for k in range(8):
            r.append(f"v_exp_f32 v{vE+(2*k)%8}, v{S+2*k}")
            r.append(f"v_exp_f32 v{vE+(2*k+1)%8}, v{S+2*k+1}")
            if k > 0: r += post(k - 1)
        r += post(7)
        return r
    def fixup(sb, has_next, init):
        S = vS[sb]; r = ["s_nop 15"]
        mx, t = vT, vT + 1
        r.append(f"v_max3_f32 v{mx}, v{S}, v{S+1}, v{S+2}")
        for i in range(3, 15, 2):
            r.append(f"v_max3_f32 v{mx}, v{mx}, v{S+i}, v{S+i+1}")
        r.append(f"v_max_f32 v{mx}, v{mx}, v{S+15}")
        r.append(f"v_mov_b32 v{t}, v{mx}")
        r.append("s_nop 1")
        r.append(f"v_permlane32_swap_b32 v{mx}, v{t}")
        r.append("s_nop 1")
        r.append(f"v_max_f32 v{mx}, v{mx}, v{t}")
        if not init:
            r.append(f"v_max_f32 v{mx}, 0, v{mx}")
            r.append(f"v_exp_f32 v{t}, -v{mx}")
            r.append("s_nop 0")
            for i in range(64): r.append(f"v_mul_f32 v{vO+i}, v{vO+i}, v{t}")
            r.append(f"v_mul_f32 v{vL}, v{vL}, v{t}")
        for i in range(16): r.append(f"v_sub_f32 v{vC+i}, v{vC+i}, v{mx}")
        for i in range(16): r.append(f"v_sub_f32 v{S+i}, v{S+i}, v{mx}")
        if has_next:
            for i in range(16): r.append(f"v_sub_f32 v{vS[1-sb]+i}, v{vS[1-sb]+i}, v{mx}")
        if not init:
            r += sm(sb)
            r.append("s_nop 1")
        return r
    def mask_code():
        r = []
        for g in range(0, 16, 3):
            grp = list(range(g, min(g + 3, 16)))
            for j, i in enumerate(grp):
                cr = (i & 3) + 8 * (i >> 2)
                r.append(f"v_cmp_gt_i32 s[{sMk+2*j}:{sMk+2*j+1}], {cr}, v{vDq}")
            if len(grp) < 3: r.append("s_nop 1")
            for j, i in enumerate(grp):
                r.append(f"v_cndmask_b32 v{vC+i}, v{vC+i}, v{vNeg}, s[{sMk+2*j}:{sMk+2*j+1}]")
        r.append("s_nop 1")
        return r
    def mask_check(val):
        lab = a.newlabel("k2mask"); ret = a.newlabel("k2mret")
        a(f"s_cmp_eq_u32 s{sRem}, {val}")
        a(f"s_cbranch_scc1 {lab}")
        a.label(ret)
        rare.append((lab, mask_code(), ret))

    def sm_gaps(sb, n):
        S = vS[sb]; P = vP[sb]
        gaps = [[] for _ in range(n)]
        E = lambda r: vE + r % 8
        if n == 16:
            eg = [0, 0, 1, 2, 2, 3, 4, 5, 6, 7, 8, 9, 10, 11, 12, 13]
            cap = [20 - (4 if g % 4 == 3 else 0) for g in range(16)]
        else:
            eg = [r * (n - 1) // 16 for r in range(16)]
            cap = [1000] * n
        posts = []
        for r in range(16):
            late = lambda q: (eg[q + 8] - 1) if q + 8 < 16 else n - (2 if n == 16 else 1)
            if r == 1: posts.append((eg[r] + 1, late(0), f"v_add_f32 v{vTS}, v{E(0)}, v{E(1)}"))
            elif r > 1: posts.append((eg[r] + 1, late(r), f"v_add_f32 v{vTS}, v{vTS}, v{E(r)}"))
            if r & 1: posts.append((eg[r] + 1, late(r - 1), f"v_cvt_pk_bf16_f32 v{P+r//2}, v{E(r-1)}, v{E(r)}"))
        for r in range(16):
            gaps[eg[r]].append(f"v_exp_f32 v{E(r)}, v{S+r}"); cap[eg[r]] -= 8
        k = 0
        for g in range(n):
            while k < len(posts) and posts[k][0] <= g and (cap[g] >= 4 or any(pp[1] <= g for pp in posts[k:])):
                assert posts[k][1] >= g
                gaps[g].append(posts[k][2]); cap[g] -= 4; k += 1
        assert k == len(posts)
        return gaps
    def body(role, p, qk, pv, dosm, pre, nxt, extra=(), first=False, chk=None, tailx=()):
        ms = (list(range(8)) if qk else []) + (list(range(8, 16)) if pv else [])
        n = len(ms)
        seq = [(m, p, vRd) for m in ms] + [(m, 1 - p, vRd if p == 0 else vRn) for m in nxt[:D]]
        gaps = sm_gaps(1 - p, n) if dosm else [[] for _ in range(n)]
        if p == 0:
            if first: a("s_waitcnt vmcnt(0)")
            elif role == "B": a("s_waitcnt vmcnt(8)")
            a("s_barrier")
            if role == "B":
                dma = dma_issue()
                if first: dma = dma + dma_issue() + dma_issue()
                for k, x in enumerate(dma):
                    gaps[k * n // len(dma)].append(x)
        for k, x in enumerate(extra):
            gaps[k * n // len(extra)].append(x)
        issued = min(pre, len(seq))
        if pre == 0:
            if not first: a("s_waitcnt lgkmcnt(0)")
            issued = min(D, len(seq))
            if n == 8 and nxt and ms[0] == nxt[0]: issued = 8
            for i in range(issued):
                a(frag_read(seq[i][0], *seq[i]))
        W = 4 if n == 16 else 2
        out = []
        for i, m in enumerate(ms):
            if i % W == 0:
                out.append(f"s_waitcnt lgkmcnt({max(issued - i - W, 0)})")
            out.append(mfma(m, m, p))
            if issued < len(seq) and not (issued >= n and seq[issued][0] in ms[i+1:]):
                out.append(frag_read(seq[issued][0], *seq[issued]))
                issued += 1
            out += gaps[i]
            if chk is not None and i == n - 2 and n == 16:
                out.append(f"v_cmp_nge_f32 vcc, {hexf(TH)}, v{vTS}")
        while issued < len(seq):
            out.append(frag_read(seq[issued][0], *seq[issued])); issued += 1
        if p == 1:
            out.append(f"v_mov_b32 v{vRd}, v{vRn}")
            out.append(f"v_add_u32 v{vRn}, 32768, v{vRn}")
            out.append(f"v_and_b32 v{vRn}, 0x1ffff, v{vRn}")
        out += list(tailx)
        a.ext(out)
        if chk is not None:
            lab = a.newlabel("k2rare"); ret = a.newlabel("k2ret")
            if n != 16: a(f"v_cmp_nge_f32 vcc, {hexf(TH)}, v{vTS}")
            a(f"s_cbranch_vccnz {lab}")
            a.label(ret)
            a(f"v_add_f32 v{vL}, v{vL}, v{vTS}")
            rare.append((lab, fixup(1 - p, chk, False), ret))

    def z_loads():
        r = [f"s_lshr_b32 s{sZo}, s2, 2",
             f"s_mul_i32 s{sZo}, s{sZo}, {56*2048}",
             f"s_and_b32 s{sZs}, s2, 3",
             f"s_lshl_b32 s{sZs}, s{sZs}, 7",
             f"s_add_u32 s{sZo}, s{sZo}, s{sZs}",
             f"s_lshl_b32 s{sZs}, s{sQg}, 5",
             f"s_add_u32 s{sZo}, s{sZo}, s{sZs}",
             f"s_add_u32 s{sZo}, s{sZo}, {28*2048}",
             f"v_lshrrev_b32 v{vQ+16}, 1, v{vLane}",
             f"v_lshlrev_b32 v{vQ+16}, 9, v{vQ+16}",
             f"v_and_b32 v{vQ+17}, 1, v{vLane}",
             f"v_lshl_add_u32 v{vQ+16}, v{vQ+17}, 4, v{vQ+16}",
             f"v_add_u32 v{vQ+17}, 16384, v{vQ+16}",
             f"v_add_u32 v{vQ+18}, 32768, v{vQ+16}",
             f"v_lshlrev_b32 v{vQ+19}, 25, v{vLane}",
             f"v_and_b32 v{vQ+19}, 0x40000000, v{vQ+19}",
             f"v_add3_u32 v{vQ+20}, v{vQ+19}, v{vQ+17}, v{vQ+18}",
             f"v_sub_u32 v{vQ+20}, v{vQ+20}, v{vQ+16}"]
        for k, ad in enumerate((16, 17, 18, 20)):
            r.append(f"buffer_load_dwordx4 {vr(vQ+4*k,4)}, v{vQ+ad}, s[{sZ}:{sZ+3}], s{sZo} offen")
        return r

    KF = list(range(8)); VF = list(range(8, 16)); AF = list(range(16))
    mask_check(0)
    a(f"s_cmp_eq_u32 s{sBlk}, 0")
    a("s_cbranch_scc0 L_k2_B")
    for role in "AB":
        a.label(f"L_k2_{role}")
        body(role, 0, True, False, False, 0, AF, first=True)
        st.stamp(2)
        a.ext(fixup(0, False, True))
        if role == "B": a("s_waitcnt vmcnt(16)")
        a("s_barrier")
        st.stamp(3)
        a(f"s_cmp_lt_u32 s{sRem}, 3")
        a(f"s_cbranch_scc1 L_k2_{role}_odd")
        a.label(f"L_k2_{role}_loop")
        body(role, 1, True, True, True, D, AF, chk=True)
        body(role, 0, True, True, True, D, AF, chk=True)
        a(f"s_sub_u32 s{sRem}, s{sRem}, 2")
        a(f"s_cmp_ge_u32 s{sRem}, 3")
        a(f"s_cbranch_scc1 L_k2_{role}_loop")
        a.label(f"L_k2_{role}_odd")
        a(f"s_cmp_eq_u32 s{sRem}, 0")
        a(f"s_cbranch_scc1 L_k2_{role}_drain_odd")
        mask_check(1)
        body(role, 1, True, True, True, D, AF, chk=True)
        a(f"s_cmp_eq_u32 s{sRem}, 1")
        a(f"s_cbranch_scc1 L_k2_{role}_drain_even")
        a.ext(mask_code())
        body(role, 0, True, True, True, D, AF, chk=True)
        a.label(f"L_k2_{role}_drain_odd")
        st.stamp(4)
        zl = z_loads() if role == "B" else []
        body(role, 1, False, True, True, 0, VF, extra=zl, chk=False)
        body(role, 0, False, True, False, D, [])
        a("s_branch L_k2_epi")
        a.label(f"L_k2_{role}_drain_even")
        st.stamp(4)
        body(role, 0, False, True, True, 0, VF, extra=zl, chk=False)
        body(role, 1, False, True, False, D, [])
        if role == "A": a("s_branch L_k2_epi")
    a.label("L_k2_epi")
    st.stamp(5)
    a(f"v_mov_b32 v{vT}, v{vL}")
    a(f"s_lshl_b32 s{sCoff}, s{sTb}, 18")
    a(f"s_lshl_b32 s{sTmp}, s{sH}, 13")
    a(f"v_permlane32_swap_b32 v{vL}, v{vT}")
    a(f"s_add_u32 s{sCoff}, s{sCoff}, s{sTmp}")
    a(f"s_add_u32 s{sTmp}, s{sCoff}, 4096")
    a(f"v_add_f32 v{vT}, v{vL}, v{vT}")
    a(f"v_rcp_f32 v{vT}, v{vT}")
    a("s_nop 7")
    for i in range(8):
        for j in range(8):
            a(f"v_mul_f32 v{vO+8*i+j}, v{vO+8*i+j}, v{vT}")
        for j in range(4):
            a(f"v_cvt_pk_bf16_f32 v{vS[0]+4*i+j}, v{vO+8*i+2*j}, v{vO+8*i+2*j+1}")
        so = sCoff if i < 4 else sTmp
        a(f"buffer_store_dwordx4 {vr(vS[0]+4*i,4)}, v{vL16}, s[{sCx}:{sCx+3}], s{so} offen offset:{(i&3)*1024}")
    st.stamp(6)
    a(f"s_cmp_eq_u32 s{sBlk}, 0")
    a("s_cbranch_scc1 L_k2_end")
    s1, s2, one, t1, t2 = vO, vO+1, vO+2, vO+3, vO+4
    a(f"v_mov_b32 v{one}, 0x3f803f80")
    a(f"v_mov_b32 v{s1}, 0")
    a(f"v_mov_b32 v{s2}, 0")
    a("s_waitcnt vmcnt(8)")
    for i in range(16):
        a(f"v_dot2_f32_bf16 v{s1}, v{vQ+i}, v{one}, v{s1}")
        a(f"v_dot2_f32_bf16 v{s2}, v{vQ+i}, v{vQ+i}, v{s2}")
    a("s_nop 2")
    for ror in (2, 4, 8):
        a(f"v_add_f32_dpp v{s1}, v{s1}, v{s1} row_ror:{ror} row_mask:0xf bank_mask:0xf")
        a(f"v_add_f32_dpp v{s2}, v{s2}, v{s2} row_ror:{ror} row_mask:0xf bank_mask:0xf")
        a("s_nop 0")
    for sw in ("v_permlane16_swap_b32", "v_permlane32_swap_b32"):
        a(f"v_mov_b32 v{t1}, v{s1}")
        a(f"v_mov_b32 v{t2}, v{s2}")
        a("s_nop 1")
        a(f"{sw} v{s1}, v{t1}")
        a(f"{sw} v{s2}, v{t2}")
        a("s_nop 1")
        a(f"v_add_f32 v{s1}, v{s1}, v{t1}")
        a(f"v_add_f32 v{s2}, v{s2}, v{t2}")
    mean, var, rr, nb, so = vO+5, vO+6, vO+7, vO+8, vO+9
    a(f"v_mul_f32 v{mean}, {hexf(1/896)}, v{s1}")
    a(f"v_mul_f32 v{var}, {hexf(1/896)}, v{s2}")
    a(f"v_fma_f32 v{var}, -v{mean}, v{mean}, v{var}")
    a(f"v_max_f32 v{var}, 0, v{var}")
    a(f"v_add_f32 v{var}, {hexf(1e-5)}, v{var}")
    a(f"v_rsq_f32 v{rr}, v{var}")
    a(f"v_and_b32 v{so}, 1, v{vLane}")
    a(f"v_mul_u32_u24 v{so}, 1792, v{so}")
    a(f"v_lshrrev_b32 v{t1}, 1, v{vLane}")
    a(f"v_lshl_add_u32 v{so}, v{t1}, 4, v{so}")
    a(f"v_add_u32 v{so+1}, v{vQ+19}, v{so}")
    a(f"s_lshl_b32 s{sZs}, s2, 2")
    a(f"s_add_u32 s{sZs}, s{sZs}, s{sQg}")
    a(f"s_mul_i32 s{sZs}, s{sZs}, {2*1792}")
    a(f"v_mul_f32 v{nb}, v{mean}, v{rr}")
    a(f"v_sub_f32 v{nb}, 0, v{nb}")
    for k in range(4):
        for i in range(4*k, 4*k+4):
            a(f"v_lshlrev_b32 v{t1}, 16, v{vQ+i}")
            a(f"v_and_b32 v{t2}, 0xffff0000, v{vQ+i}")
            a(f"v_fma_f32 v{t1}, v{t1}, v{rr}, v{nb}")
            a(f"v_fma_f32 v{t2}, v{t2}, v{rr}, v{nb}")
            a(f"v_cvt_pk_bf16_f32 v{vQ+i}, v{t1}, v{t2}")
        a(f"buffer_store_dwordx4 {vr(vQ+4*k,4)}, v{so + (1 if k == 3 else 0)}, s[{sZN}:{sZN+3}], s{sZs} offen offset:{k*512}")
    st.stamp(7)
    srd(a, sZ, 58, 59, 2048 * 4096)
    srd(a, sCx, 6, 7, 4096 * 1024)
    srd(a, sQ, 100, 101, 896 * 1024)
    a(f"s_lshl_b32 s{sQoff}, s2, 2")
    a(f"s_add_u32 s{sQoff}, s{sQoff}, s{sQg}")
    a(f"s_lshl_b32 s{sQoff}, s{sQoff}, 11")
    a(f"s_cmp_lt_u32 s2, 128")
    a(f"s_cselect_b32 s{sCnt}, {16 if os.environ.get('PF') == 'k2' else 0}, 0")
    a(f"v_and_b32 v{vT+2}, 7, v{vLane}")
    a(f"v_lshlrev_b32 v{vT+2}, 7, v{vT+2}")
    a(f"v_and_b32 v{vT+3}, 0x1ff, v{vT+2}")
    a(f"v_mov_b32 v{vT+5}, 0")
    if st.on and os.environ.get("LAT"):
        a("s_waitcnt vmcnt(0)")
        a(f"s_lshl_b32 s{sZs}, s{sQoff}, 2")
        st.stamp(9)
        a(f"buffer_load_dword v{vT+4}, v{vT+2}, s[{sZ}:{sZ+3}], s{sZs} offen")
        a("s_waitcnt vmcnt(0)")
        st.stamp(10)
        a(f"buffer_load_dword v{vT+4}, v{vT+2}, s[{sZ}:{sZ+3}], s{sZs} offen offset:1024")
        a("s_waitcnt vmcnt(0)")
        st.stamp(11)
        a(f"s_add_u32 s50, s58, s{sZs}")
        a(f"s_addc_u32 s51, s59, 0")
        a(f"s_load_dword s52, s[50:51], 2048")
        a("s_waitcnt lgkmcnt(0)")
        st.stamp(12)
        a(f"s_load_dword s52, s[50:51], 4096")
        a("s_waitcnt lgkmcnt(0)")
        st.stamp(13)
    for it in range(3):
        if it == 2: a.label("L_k2_idle_loop")
        a(f"s_cmp_eq_u32 s{sLeft}, 0")
        a("s_cbranch_scc1 L_k2_end")
        a(f"s_waitcnt vmcnt({14 if it == 2 else 8})")
        a("s_barrier")
        a.ext(dma_issue())
        a(f"s_cmp_lg_u32 s{sCnt}, 0")
        a(f"s_cselect_b32 s{sZo}, s{sQoff}, 0x10000000")
        a(f"s_cselect_b32 s{sTmp2}, 1, 0")
        a(f"s_sub_u32 s{sCnt}, s{sCnt}, s{sTmp2}")
        a(f"s_lshl_b32 s{sZs}, s{sZo}, 3")
        a(f"s_lshl_b32 s{sQoff2}, s{sZo}, 2")
        a(f"s_add_u32 s{sQoff}, s{sQoff}, 128")
        a(f"buffer_load_dword v{vT+4}, v{vT+2}, s[{sZ}:{sZ+3}], s{sZs} offen")
        a(f"buffer_load_dword v{vT+4}, v{vT+3}, s[{sCx}:{sCx+3}], s{sQoff2} offen")
        a(f"buffer_load_dword v{vT+4}, v{vT+5}, s[{sQ}:{sQ+3}], s{sZo} offen")
    a("s_branch L_k2_idle_loop")
    a.label("L_k2_end")
    if st.on: a("s_waitcnt vmcnt(0)")
    st.stamp(8)
    st.dump(4, sWave)
    a.label("L_k2_exit")
    a("s_endpgm")
    for (lab, code, ret) in rare:
        a.label(lab)
        a.ext(code)
        a(f"s_branch {ret}")
    return nv
```

```python
from asmlib import *
from layout import *
GRID, BLOCK, LDS = 256, 512, 131072
OOB = 0x80000000

def gen_k3(a, name="k3_kernel"):
    va = Alloc(1)
    vAcc = va.get(64, 4)
    vF = va.get(64, 4)
    vZ1 = va.get(16, 4)
    vXa = [[va.get(), va.get()], [va.get(), va.get()]]
    vWa = [[va.get(), va.get()], [va.get(), va.get()]]
    vDX = [va.get(), va.get()]; vDW = [va.get(), va.get()]
    vL16 = va.get(); vLane = va.get(); vB = va.get()
    vT = va.get(8, 2)
    nv = va.p
    sX, sW, sO, sZ, sBi = 20, 24, 28, 32, 36
    (sWave, sKg, sWm, sWn, sRb, sCol, sSplit, sXoff, sWoff, sSlot, sW4k, sIt, sLd, sTmp, sTmp2, sXo, sWo, sTb, sOoff) = range(40, 59)

    a(f".globl {name}\n.p2align 8\n.type {name},@function")
    a.label(name)
    a("s_cmp_ge_u32 s2, 256")
    a("s_cbranch_scc1 L_k3_exit")
    st = Stamper(a, "k3")
    st.stamp(0); st.real(1)
    a(f"s_load_dwordx2 s[4:5], s[0:1], {KA_WS}")
    a(f"s_load_dwordx2 s[6:7], s[0:1], {KA_WO}")
    a(f"s_load_dwordx4 s[8:11], s[0:1], {KA_WSP}")
    a(f"v_lshrrev_b32 v{vT}, 6, v0")
    a(f"v_and_b32 v{vLane}, 63, v0")
    a(f"v_readfirstlane_b32 s{sWave}, v{vT}")
    a(f"v_lshlrev_b32 v{vL16}, 4, v{vLane}")
    a(f"s_lshr_b32 s{sKg}, s{sWave}, 2")
    a(f"s_and_b32 s{sWm}, s{sWave}, 1")
    a(f"s_bfe_u32 s{sWn}, s{sWave}, 0x10001")
    a(f"s_lshl_b32 s{sW4k}, s{sWave}, 12")
    a(f"s_and_b32 s{sTmp}, s2, 7")
    a(f"s_lshr_b32 s{sTmp2}, s2, 3")
    a("s_waitcnt lgkmcnt(0)")
    a(f"s_cmp_lt_u32 s{sTmp}, 4")
    a("s_cbranch_scc1 L_k3_O")
    a(f"s_cmp_ge_u32 s{sTmp2}, 28")
    a("s_cbranch_scc1 L_k3_exit")

    for kind in "SO":
        a.label(f"L_k3_{kind}")
        if kind == "S":
            wrs = 1792
            a(f"s_mul_i32 s{sRb}, s{sTmp2}, 37")
            a(f"s_lshr_b32 s{sRb}, s{sRb}, 8")
            a(f"s_mul_i32 s{sCol}, s{sRb}, 7")
            a(f"s_sub_u32 s{sCol}, s{sTmp2}, s{sCol}")
            a(f"s_sub_u32 s{sTmp}, s{sTmp}, 4")
            a(f"s_lshl_b32 s{sTmp}, s{sTmp}, 2")
            a(f"s_add_u32 s{sRb}, s{sRb}, s{sTmp}")
            srd(a, sX, 8, 9, 2048 * 4096)
            srd_off(a, sW, 4, 5, WS_Z2N, 2048 * 1792)
            srd_off(a, sO, 4, 5, WS_H, 64 * 56 * 1024)
            srd_off(a, sZ, 4, 5, WS_Z, 64 * 56 * 2048)
            srd(a, sBi, 10, 11, 4096)
            a(f"s_lshl_b32 s{sXoff}, s{sRb}, 19")
            a(f"s_lshl_b32 s{sWoff}, s{sCol}, 8")
            xstep, wstep = 128, 64 * wrs
            for i in range(2):
                a(f"v_lshrrev_b32 v{vT}, 3, v{vLane}")
                a(f"s_lshl_b32 s{sTmp}, s{sWave}, 4")
                a(f"s_add_u32 s{sTmp}, s{sTmp}, {8*i}")
                a(f"v_add_u32 v{vT}, s{sTmp}, v{vT}")
                a(f"v_bfe_u32 v{vT+1}, v{vT}, 1, 3")
                a(f"v_and_b32 v{vT+2}, 7, v{vLane}")
                a(f"v_xor_b32 v{vT+1}, v{vT+1}, v{vT+2}")
                a(f"v_lshlrev_b32 v{vT}, 12, v{vT}")
                a(f"v_lshl_add_u32 v{vDX[i]}, v{vT+1}, 4, v{vT}")
            a(f"v_subrev_u32 v{vDX[1]}, 1024, v{vDX[1]}")
            for ksl in range(2):
                a(f"v_and_b32 v{vT}, 31, v{vLane}")
                a(f"v_lshrrev_b32 v{vT+1}, 4, v{vT}")
                a(f"v_lshlrev_b32 v{vT+1}, 12, v{vT+1}")
                a(f"v_and_b32 v{vT+2}, 15, v{vT}")
                a(f"v_lshl_add_u32 v{vT+1}, v{vT+2}, 7, v{vT+1}")
                a(f"v_bfe_u32 v{vT+2}, v{vT}, 1, 3")
                a(f"v_lshrrev_b32 v{vT+3}, 5, v{vLane}")
                a(f"s_lshl_b32 s{sTmp}, s{sKg}, 2")
                a(f"s_add_u32 s{sTmp}, s{sTmp}, {2*ksl}")
                a(f"v_add_u32 v{vT+3}, s{sTmp}, v{vT+3}")
                a(f"v_xor_b32 v{vT+2}, v{vT+2}, v{vT+3}")
                a(f"v_lshl_add_u32 v{vT+1}, v{vT+2}, 4, v{vT+1}")
                a(f"s_lshl_b32 s{sTmp}, s{sWm}, 14")
                a(f"v_add_u32 v{vXa[0][ksl]}, s{sTmp}, v{vT+1}")
        else:
            wrs = 1024
            a(f"s_lshr_b32 s{sSplit}, s{sTmp}, 1")
            a(f"s_and_b32 s{sRb}, s{sTmp}, 1")
            a(f"s_lshl_b32 s{sRb}, s{sRb}, 3")
            a(f"s_lshr_b32 s{sTmp}, s{sTmp2}, 2")
            a(f"s_add_u32 s{sRb}, s{sRb}, s{sTmp}")
            a(f"s_and_b32 s{sCol}, s{sTmp2}, 3")
            srd_off(a, sX, 4, 5, WS_CTX, 16 * MB)
            srd(a, sW, 6, 7, 4096 * 1024)
            srd_off(a, sO, 4, 5, WS_P, 8 * MB)
            a(f"s_lshl_b32 s{sXoff}, s{sRb}, 20")
            a(f"s_lshl_b32 s{sTmp}, s{sSplit}, 17")
            a(f"s_add_u32 s{sXoff}, s{sXoff}, s{sTmp}")
            a(f"s_lshl_b32 s{sWoff}, s{sCol}, 8")
            a(f"s_lshl_b32 s{sTmp}, s{sSplit}, 21")
            a(f"s_add_u32 s{sWoff}, s{sWoff}, s{sTmp}")
            xstep, wstep = 4096, 64 * wrs
            a(f"s_lshr_b32 s{sTmp}, s{sWave}, 1")
            a(f"s_lshl_b32 s{sTmp}, s{sTmp}, 18")
            a(f"s_lshl_b32 s{sTmp2}, s{sWm}, 11")
            a(f"s_add_u32 s{sTmp}, s{sTmp}, s{sTmp2}")
            a(f"v_add_u32 v{vDX[0]}, s{sTmp}, v{vL16}")
            a(f"v_mov_b32 v{vDX[1]}, v{vDX[0]}")
            a(f"s_lshl_b32 s{sTmp}, s{sWm}, 14")
            a(f"s_lshl_b32 s{sTmp2}, s{sKg}, 12")
            a(f"s_add_u32 s{sTmp}, s{sTmp}, s{sTmp2}")
            a(f"v_add_u32 v{vXa[0][0]}, s{sTmp}, v{vL16}")
            a(f"v_add_u32 v{vXa[0][1]}, 1024, v{vXa[0][0]}")
        a(f"v_lshrrev_b32 v{vT}, 4, v{vLane}")
        a(f"v_lshlrev_b32 v{vT+1}, 2, v{vT}")
        a(f"v_and_b32 v{vT+2}, 15, v{vLane}")
        a(f"v_xor_b32 v{vT+1}, v{vT+1}, v{vT+2}")
        a(f"s_lshl_b32 s{sTmp}, s{sWave}, 3")
        a(f"v_add_u32 v{vT}, s{sTmp}, v{vT}")
        a(f"v_mul_u32_u24 v{vT}, {wrs}, v{vT}")
        a(f"v_lshl_add_u32 v{vDW[0]}, v{vT+1}, 4, v{vT}")
        a(f"v_add_u32 v{vDW[1]}, {4*wrs - 1024}, v{vDW[0]}")
        a(f"s_sub_u32 s{sW}, s{sW}, 2048")
        a(f"s_subb_u32 s{sW+1}, s{sW+1}, 0")
        a(f"s_add_u32 s{sW+2}, s{sW+2}, 2048")
        for nb in range(2):
            a(f"v_bfe_u32 v{vT}, v{vLane}, 2, 2")
            a(f"v_lshlrev_b32 v{vT+1}, 8, v{vT}")
            a(f"s_lshl_b32 s{sTmp}, s{sWn}, 1")
            a(f"s_add_u32 s{sTmp}, s{sTmp}, {nb}")
            a(f"v_xor_b32 v{vT}, s{sTmp}, v{vT}")
            a(f"v_lshl_add_u32 v{vT+1}, v{vT}, 6, v{vT+1}")
            a(f"v_bfe_u32 v{vT}, v{vLane}, 4, 1")
            a(f"v_lshl_add_u32 v{vT+1}, v{vT}, 5, v{vT+1}")
            if kind == "S":
                a(f"v_and_b32 v{vT}, 1, v{vLane}")
                a(f"v_lshl_add_u32 v{vT+1}, v{vT}, 4, v{vT+1}")
                a(f"v_bfe_u32 v{vT}, v{vLane}, 1, 1")
                a(f"v_lshl_add_u32 v{vT+1}, v{vT}, 3, v{vT+1}")
            else:
                a(f"v_and_b32 v{vT}, 3, v{vLane}")
                a(f"v_lshl_add_u32 v{vT+1}, v{vT}, 3, v{vT+1}")
            a(f"v_lshrrev_b32 v{vT}, 5, v{vLane}")
            a(f"v_lshl_add_u32 v{vT+1}, v{vT}, {12 if kind == 'S' else 10}, v{vT+1}")
            a(f"s_lshl_b32 s{sTmp}, s{sKg}, 14")
            a(f"s_add_u32 s{sTmp}, s{sTmp}, 2048")
            a(f"v_add_u32 v{vWa[0][nb]}, s{sTmp}, v{vT+1}")
        poff = 1024 if kind == "S" else 4096
        for i in range(2):
            a(f"v_add_u32 v{vXa[1][i]}, 0x10000, v{vXa[0][i]}")
            a(f"v_add_u32 v{vWa[1][i]}, 0x10000, v{vWa[0][i]}")
        a(f"s_lshl_b32 s{sTb}, s{sRb}, 2")
        a(f"s_lshl_b32 s{sTmp}, s{sWm}, 1")
        a(f"s_add_u32 s{sTb}, s{sTb}, s{sTmp}")
        a(f"s_add_u32 s{sTb}, s{sTb}, s{sKg}")
        if kind == "S":
            a(f"s_lshl_b32 s{sTmp}, s{sCol}, 2")
            a(f"s_lshl_b32 s{sTmp2}, s{sWn}, 1")
            a(f"s_add_u32 s{sTmp}, s{sTmp}, s{sTmp2}")
            a(f"s_lshl_b32 s{sTmp}, s{sTmp}, 11")
            a(f"s_mul_i32 s{sOoff}, s{sTb}, {56*1024}")
            a(f"s_add_u32 s{sOoff}, s{sOoff}, s{sTmp}")
            a(f"s_mul_i32 s{sTmp2}, s{sTb}, {56*2048}")
            a(f"s_add_u32 s{sTmp2}, s{sTmp2}, s{sTmp}")
            for i in range(4):
                a(f"buffer_load_dwordx4 {vr(vZ1+4*i,4)}, v{vL16}, s[{sZ}:{sZ+3}], s{sTmp2} offen offset:{i*1024}")
            a(f"v_and_b32 v{vT}, 31, v{vLane}")
            a(f"v_lshlrev_b32 v{vT}, 1, v{vT}")
            a(f"s_lshl_b32 s{sTmp}, s{sTb}, 6")
            a(f"buffer_load_ushort v{vB}, v{vT}, s[{sBi}:{sBi+3}], s{sTmp} offen")
        else:
            a(f"s_lshl_b32 s{sOoff}, s{sSplit}, 22")
            a(f"s_lshl_b32 s{sTmp}, s{sTb}, 16")
            a(f"s_add_u32 s{sOoff}, s{sOoff}, s{sTmp}")
            a(f"s_lshl_b32 s{sTmp}, s{sCol}, 14")
            a(f"s_add_u32 s{sOoff}, s{sOoff}, s{sTmp}")
            a(f"s_lshl_b32 s{sTmp}, s{sWn}, 13")
            a(f"s_add_u32 s{sOoff}, s{sOoff}, s{sTmp}")

        def dma_issue(slot):
            r = [f"s_cmp_lt_u32 s{sLd}, 32",
                 f"s_cselect_b32 s{sXo}, s{sXoff}, {OOB}",
                 f"s_cselect_b32 s{sWo}, s{sWoff}, {OOB}",
                 f"s_add_u32 m0, s{sW4k}, {slot*32768}",
                 f"s_add_u32 s{sXoff}, s{sXoff}, {xstep}",
                 f"s_add_u32 s{sWoff}, s{sWoff}, {wstep}",
                 f"s_add_u32 s{sLd}, s{sLd}, 1"]
            r.append(f"buffer_load_dwordx4 v{vDX[0]}, s[{sX}:{sX+3}], s{sXo} offen lds")
            r.append(f"buffer_load_dwordx4 v{vDX[1]}, s[{sX}:{sX+3}], s{sXo} offen offset:1024 lds")
            r.append(f"buffer_load_dwordx4 v{vDW[0]}, s[{sW}:{sW+3}], s{sWo} offen offset:2048 lds")
            r.append(f"buffer_load_dwordx4 v{vDW[1]}, s[{sW}:{sW+3}], s{sWo} offen offset:3072 lds")
            return r
        a(f"s_mov_b32 s{sLd}, 0")
        for s in range(3): a.ext(dma_issue(s))
        for i in range(64): a(f"v_mov_b32 v{vAcc+i}, 0")
        def reads(step):
            step %= 8
            slot, ksl = step >> 1, step & 1
            hi = slot >> 1; so = (slot & 1) * 32768
            f = vF + 16 * (step % 4)
            r = [f"ds_read_b128 {vr(f,4)}, v{vXa[hi][ksl]} offset:{so}"]
            r.append(f"ds_read_b64_tr_b16 {vr(f+8,2)}, v{vWa[hi][0]} offset:{so + ksl*8192}")
            r.append(f"ds_read_b64_tr_b16 {vr(f+10,2)}, v{vWa[hi][0]} offset:{so + ksl*8192 + poff}")
            r.append(f"ds_read_b64_tr_b16 {vr(f+12,2)}, v{vWa[hi][1]} offset:{so + ksl*8192}")
            r.append(f"ds_read_b64_tr_b16 {vr(f+14,2)}, v{vWa[hi][1]} offset:{so + ksl*8192 + poff}")
            r.append(f"ds_read_b128 {vr(f+4,4)}, v{vXa[hi][ksl]} offset:{so + 8192}")
            return r
        st.stamp(2)
        a("s_waitcnt vmcnt(8)")
        a("s_barrier")
        st.stamp(3)
        a.ext(reads(0)); a.ext(reads(1))
        a(f"s_mov_b32 s{sIt}, 0")
        a.label(f"L_k3_{kind}_loop")
        for stg in range(4):
            a("s_waitcnt vmcnt(4)")
            a("s_barrier")
            dma = dma_issue((stg + 3) & 3)
            for ksl in range(2):
                step = 2 * stg + ksl
                f = vF + 16 * (step % 4)
                rd = reads(step + 2)
                def mm(tb2, nb):
                    acc = vAcc + 32 * tb2 + 16 * nb
                    return f"v_mfma_f32_32x32x16_bf16 {vr(acc,16)}, {vr(f+8+4*nb,4)}, {vr(f+4*tb2,4)}, {vr(acc,16)}"
                a("s_waitcnt lgkmcnt(9)")
                a(mm(0, 0)); a.ext(rd[0:2])
                if ksl == 0: a.ext(dma[:8])
                a("s_waitcnt lgkmcnt(9)")
                a(mm(0, 1)); a.ext(rd[2:4])
                if ksl == 0: a(dma[8])
                a("s_waitcnt lgkmcnt(10)")
                a(mm(1, 0)); a.ext(rd[4:6])
                if ksl == 0: a(dma[9])
                a(mm(1, 1))
                if ksl == 0: a(dma[10])
        a(f"s_add_u32 s{sIt}, s{sIt}, 1")
        a(f"s_cmp_lt_u32 s{sIt}, 8")
        a(f"s_cbranch_scc1 L_k3_{kind}_loop")
        st.stamp(4)
        a("s_waitcnt vmcnt(0) lgkmcnt(0)")
        a("s_barrier")
        a(f"s_lshl_b32 s{sTmp}, s{sWave}, 13")
        a(f"v_add_u32 v{vT}, s{sTmp}, v{vL16}")
        a(f"v_xor_b32 v{vT+1}, 0x8000, v{vT}")
        a("s_nop 7")
        a(f"s_cmp_eq_u32 s{sKg}, 0")
        a(f"s_cbranch_scc0 L_k3_{kind}_e1")
        for kg in range(2):
            if kg == 1: a.label(f"L_k3_{kind}_e1")
            send = vAcc + (32 if kg == 0 else 0); keep = vAcc + (0 if kg == 0 else 32)
            for i in range(8):
                a(f"ds_write_b128 v{vT}, {vr(send+4*i,4)} offset:{i*1024}")
            a("s_waitcnt lgkmcnt(0)")
            a("s_barrier")
            for i in range(8):
                a(f"ds_read_b128 {vr(send+4*i,4)}, v{vT+1} offset:{i*1024}")
            if kind == "S":
                a(f"v_lshlrev_b32 v{vB}, 16, v{vB}")
                a(f"s_add_u32 s{sTmp}, s{sOoff}, 0")
            for i in range(4):
                a(f"s_waitcnt lgkmcnt({6-2*i})")
                for j in range(8):
                    a(f"v_add_f32 v{keep+8*i+j}, v{keep+8*i+j}, v{send+8*i+j}")
                if kind == "S":
                    for j in range(8):
                        a(f"v_add_f32 v{keep+8*i+j}, v{keep+8*i+j}, v{vB}")
                    for j in range(4):
                        a(f"v_lshlrev_b32 v{vT+2}, 16, v{vZ1+4*i+j}")
                        a(f"v_and_b32 v{vT+3}, 0xffff0000, v{vZ1+4*i+j}")
                        a(f"v_mul_f32 v{vT+2}, v{vT+2}, v{keep+8*i+2*j}")
                        a(f"v_mul_f32 v{vT+3}, v{vT+3}, v{keep+8*i+2*j+1}")
                        a(f"v_cvt_pk_bf16_f32 v{vZ1+4*i+j}, v{vT+2}, v{vT+3}")
                    a(f"buffer_store_dwordx4 {vr(vZ1+4*i,4)}, v{vL16}, s[{sO}:{sO+3}], s{sOoff} offen offset:{i*1024}")
                else:
                    if i == 2: a(f"s_add_u32 s{sOoff}, s{sOoff}, 4096")
                    a(f"buffer_store_dwordx4 {vr(keep+8*i,4)}, v{vL16}, s[{sO}:{sO+3}], s{sOoff} offen offset:{(2*i&3)*1024}")
                    a(f"buffer_store_dwordx4 {vr(keep+8*i+4,4)}, v{vL16}, s[{sO}:{sO+3}], s{sOoff} offen offset:{((2*i+1)&3)*1024}")
            if st.on: a("s_waitcnt vmcnt(0)")
            st.stamp(5); st.real(6)
            st.dump(4, sWave)
            a("s_endpgm")
    a.label("L_k3_exit")
    a("s_endpgm")
    return nv
```
